```python
import torch

def _softmax(x, axis=-1):
    return torch.softmax(x, dim=axis)
def _gelu(x):
    return torch.nn.functional.gelu(x, approximate="tanh")
def _silu(x):
    return torch.nn.functional.silu(x)
def _sigmoid(x):
    return torch.sigmoid(x)
def _layernorm(x, axis=-1, eps=1e-5):
    m = x.mean(dim=axis, keepdim=True)
    v = x.var(dim=axis, keepdim=True, unbiased=False)
    return (x - m) / torch.sqrt(v + eps)
def _scatter_add(tgt, idx, src, axis=0):
    return tgt.clone().index_add_(axis, idx, src)
def _segment_sum(src, seg, n):
    out = torch.zeros((n,) + src.shape[1:], dtype=src.dtype)
    return out.index_add_(0, seg, src)
def _pad(x, pw):
    flat = tuple(v for pair in reversed(pw) for v in pair)
    return torch.nn.functional.pad(x, flat)

kernel_name = 'concat_heads__gqa_block_cached__mha_block_cached__near_ridge'

def setup_inputs():

    _w = (lambda a: (lambda t: t.to(torch.bfloat16) if t.is_floating_point() else t)(torch.as_tensor(a)))
    def _A_setup():
        B, Sq, D = 8, 96, 512
        Hq, Hkv, Sk, Dh = 32, 32, 512, 128
        assert Hq % Hkv == 0, (Hq, Hkv)
        return {
            "x": _w((lambda *s: torch.randn(*s, dtype=torch.bfloat16) * 0.8)(B, Sq, D)),
            "k_cache": _w((lambda *s: torch.randn(*s, dtype=torch.bfloat16) * 0.8)(B, Hkv, Sk, Dh)),
            "v_cache": _w((lambda *s: torch.randn(*s, dtype=torch.bfloat16) * 0.05)(B, Hkv, Sk, Dh)),
            "wq": _w((lambda *s: torch.randn(*s, dtype=torch.bfloat16) * 0.8)(D, Hq * Dh) * (D ** -0.5)),
            "wo": _w((lambda *s: torch.randn(*s, dtype=torch.bfloat16) * 0.05)(Hq * Dh, D) * ((Hq * Dh) ** -0.5)),
        }
    _A_in = _A_setup()

    def _B_setup():
        B, Sq, D = 8, 96, 512
        H, Sk, Dh = 32, 512, 128
        return {
            "x": _w((lambda *s: torch.randn(*s, dtype=torch.bfloat16) * 0.8)(B, Sq, D)),
            "k_cache": _w((lambda *s: torch.randn(*s, dtype=torch.bfloat16) * 0.8)(B, H, Sk, Dh)),
            "v_cache": _w((lambda *s: torch.randn(*s, dtype=torch.bfloat16) * 0.05)(B, H, Sk, Dh)),
            "wq": _w((lambda *s: torch.randn(*s, dtype=torch.bfloat16) * 0.8)(D, H * Dh) * (D ** -0.5)),
            "wo": _w((lambda *s: torch.randn(*s, dtype=torch.bfloat16) * 0.05)(H * Dh, D) * ((H * Dh) ** -0.5)),
        }
    _B_in = _B_setup()

    return {
        "A_x": _A_in["x"],
        "A_k_cache": _A_in["k_cache"],
        "A_v_cache": _A_in["v_cache"],
        "A_wq": _A_in["wq"],
        "A_wo": _A_in["wo"],
        "B_x": _B_in["x"],
        "B_k_cache": _B_in["k_cache"],
        "B_v_cache": _B_in["v_cache"],
        "B_wq": _B_in["wq"],
        "B_wo": _B_in["wo"],
    }

def reference(A_x, A_k_cache, A_v_cache, A_wq, A_wo, B_x, B_k_cache, B_v_cache, B_wq, B_wo):
    def _A_ref(x, k_cache, v_cache, wq, wo):
        B, Sq, D = x.shape
        Hq, Dh = 32, 128
        Hkv = k_cache.shape[1]
        rep = Hq // Hkv
        q = (lambda x, *d: x.permute(*d))((x @ wq).reshape(B, Sq, Hq, Dh), 0, 2, 1, 3)
        k = (lambda x, n, axis: torch.repeat_interleave(x, n, dim=axis))(k_cache, rep, axis=1)
        v = (lambda x, n, axis: torch.repeat_interleave(x, n, dim=axis))(v_cache, rep, axis=1)
        scores = torch.einsum("bhqd,bhkd->bhqk", q, k) * (Dh ** -0.5)
        p = _softmax(scores, axis=-1)
        o = torch.einsum("bhqk,bhkd->bhqd", p, v)
        return (lambda x, *d: x.permute(*d))(o, 0, 2, 1, 3).reshape(B, Sq, Hq * Dh) @ wo

    def _B_ref(x, k_cache, v_cache, wq, wo):
        B, Sq, D = x.shape
        H, Dh = 32, 128
        q = (lambda x, *d: x.permute(*d))((x @ wq).reshape(B, Sq, H, Dh), 0, 2, 1, 3)
        scores = torch.einsum("bhqd,bhkd->bhqk", q, k_cache) * (Dh ** -0.5)
        p = _softmax(scores, axis=-1)
        o = torch.einsum("bhqk,bhkd->bhqd", p, v_cache)
        return (lambda x, *d: x.permute(*d))(o, 0, 2, 1, 3).reshape(B, Sq, H * Dh) @ wo

    a = _A_ref(A_x, A_k_cache, A_v_cache, A_wq, A_wo)
    b = _B_ref(B_x, B_k_cache, B_v_cache, B_wq, B_wo)
    return torch.concatenate([a, b], axis=-1)
```

```python
import re
NAME = "concat_heads__gqa_block_cached__mha_block_cached__near_ridge"
HEADER = open("cdna_kernels/" + NAME + ".s.ref").read().split("; Override launch")[0]

def vr(base, n=1, f="v"):
    return f"{f}{base}" if n == 1 else f"{f}[{base}:{base+n-1}]"
def ar(base, n=1):
    return vr(base, n, "a")

class Asm:
    def __init__(self):
        self.lines = []
        self.uid = 0
        self.vmq = []
        self.lgq = []
    def __call__(self, s):
        for l in s.strip("\n").split("\n"):
            l = l.strip()
            if l: self.lines.append("    " + l)
    def c(self, s):
        self.lines.append("    ; " + s)
    def label(self, name):
        self.lines.append(name + ":")
    def newlabel(self, p="L"):
        self.uid += 1
        return f"{p}_{self.uid}"
    def text(self):
        return "\n".join(self.lines) + "\n"
    def vm(self, s, tag):
        self(s); self.vmq.append(tag)
    def ds(self, s, tag):
        self(s); self.lgq.append(tag)
    def _need(self, q, tags):
        if not isinstance(tags, (list, tuple, set)): tags = [tags]
        idx = [i for i, t in enumerate(q) if t in tags]
        if not idx: return None
        return len(q) - 1 - max(idx)
    def wait(self, vm=None, lg=None):
        parts = []
        if vm is not None:
            n = 0 if vm == "all" else self._need(self.vmq, vm)
            if n is not None and (vm != "all" or self.vmq):
                assert n <= 63, n
                parts.append(f"vmcnt({n})")
                self.vmq = self.vmq[len(self.vmq) - n:] if n else []
        if lg is not None:
            n = 0 if lg == "all" else self._need(self.lgq, lg)
            if n is not None and (lg != "all" or self.lgq):
                n = min(n, 15)
                parts.append(f"lgkmcnt({n})")
                self.lgq = self.lgq[len(self.lgq) - n:] if n else []
        if parts: self("s_waitcnt " + " ".join(parts))
    def nop(self, n):
        while n > 0:
            k = min(n, 16)
            self(f"s_nop {k-1}"); n -= k

_REG = re.compile(r"^(v|a|s)(\d+)$|^(v|a|s)\[(\d+):(\d+)\]$")
def regs_of(tok):
    tok = tok.strip()
    tok = re.sub(r"^-|^abs\(|\)$|^\|", "", tok).rstrip("|")
    m = _REG.match(tok)
    if not m:
        if tok in ("vcc", "m0", "exec"): return {tok}
        return set()
    if m.group(1): return {m.group(1) + m.group(2)}
    return {m.group(3) + str(i) for i in range(int(m.group(4)), int(m.group(5)) + 1)}

TRANS = ("v_exp_f32", "v_log_f32", "v_rcp_f32", "v_rsq_f32", "v_sqrt_f32")
def parse(line):
    l = line.split(";")[0].strip()
    if not l or l.endswith(":") or l.startswith("."): return None
    p = l.split(None, 1)
    mn = p[0]
    ops = []
    if len(p) > 1:
        rest = p[1]
        ops = [o.strip() for o in re.split(r",(?![^\[]*\])", rest)]
        if ops:
            last = ops[-1].split()
            ops[-1] = last[0] if last else ""
            mods = last[1:]
        else: mods = []
    else: mods = []
    d = dict(mn=mn, ops=ops, mods=mods, dst=set(), src=set(), cls="other", srcC=set(), line=l)
    R = regs_of
    if mn.startswith("v_mfma"):
        d["cls"] = "mfma"; d["dst"] = R(ops[0]); d["srcAB"] = R(ops[1]) | R(ops[2]); d["srcC"] = R(ops[3]); d["src"] = d["srcAB"] | d["srcC"]
        d["passes"] = 8 if "32x32x16" in mn else 4
    elif mn.startswith("v_permlane"):
        d["cls"] = "valu"; d["perm"] = True; d["dst"] = R(ops[0]) | R(ops[1]); d["src"] = R(ops[0]) | R(ops[1])
    elif mn.startswith("v_cmp"):
        d["cls"] = "valu"; d["dst"] = R(ops[0]); d["src"] = set().union(*[R(o) for o in ops[1:]])
    elif mn.startswith("v_readfirstlane") or mn.startswith("v_readlane"):
        d["cls"] = "valu"; d["rfl"] = True; d["dst"] = R(ops[0]); d["src"] = set().union(*[R(o) for o in ops[1:]])
    elif mn.startswith("v_"):
        d["cls"] = "valu"; d["dst"] = R(ops[0]); d["src"] = set().union(*[R(o) for o in ops[1:]]) if len(ops) > 1 else set()
        if mn.startswith("v_fmac") or mn.startswith("v_pk_fmac"): d["src"] |= d["dst"]
        if mn.split("_e")[0] in TRANS or mn in TRANS: d["trans"] = True
        if "dpp" in " ".join(mods) or any(m.startswith("row_") or m.startswith("quad_perm") for m in mods): d["dpp"] = True
    elif mn.startswith("ds_read") :
        d["cls"] = "ds"; d["dst"] = R(ops[0]); d["src"] = R(ops[1])
    elif mn.startswith("ds_write"):
        d["cls"] = "ds"; d["src"] = set().union(*[R(o) for o in ops])
    elif mn.startswith("buffer_load"):
        d["cls"] = "vmem"
        if "lds" in mods:
            d["src"] = set().union(*[R(o) for o in ops]) | {"m0"}; d["dma"] = True
        else:
            d["dst"] = R(ops[0]); d["src"] = set().union(*[R(o) for o in ops[1:]])
    elif mn.startswith("buffer_store") or mn.startswith("global_store"):
        d["cls"] = "vmem"; d["src"] = set().union(*[R(o) for o in ops])
        if "x4" in mn or "x3" in mn:
            d["wide"] = R(ops[0]) if mn.startswith("buffer") else R(ops[1])
    elif mn.startswith("global_load"):
        d["cls"] = "vmem"; d["dst"] = R(ops[0]); d["src"] = set().union(*[R(o) for o in ops[1:]])
    elif mn.startswith("global_atomic") or mn.startswith("buffer_atomic"):
        d["cls"] = "vmem"; d["src"] = set().union(*[R(o) for o in ops])
        if "sc0" in mods: d["dst"] = R(ops[0])
    elif mn.startswith("s_"):
        d["cls"] = "salu"
        if mn in ("s_nop", "s_waitcnt", "s_barrier", "s_endpgm", "s_setprio", "s_sleep") or mn.startswith("s_cbranch") or mn == "s_branch" or mn.startswith("s_cmp"):
            d["src"] = set().union(*[R(o) for o in ops]) if ops else set()
        else:
            d["dst"] = R(ops[0]); d["src"] = set().union(*[R(o) for o in ops[1:]]) if len(ops) > 1 else set()
    return d

def check_hazards(text):
    ins = [x for x in (parse(l) for l in text.split("\n")) if x]
    probs = []
    def states(i):
        return int(ins[i]["ops"][0], 0) + 1 if ins[i]["mn"] == "s_nop" else 1
    for j, c in enumerate(ins):
        dist = 0
        for i in range(j - 1, max(-1, j - 40), -1):
            p = ins[i]
            need = 0; why = ""
            vs = lambda S: {r for r in S if r[0] in "va" and r not in ("vcc",)}
            if p["cls"] == "valu":
                pd = p["dst"]
                if c["cls"] == "mfma" and vs(pd) & c["src"]: need, why = 2, "valu->mfma src"
                if c.get("perm") and vs(pd) & c["src"]: need, why = max(need, 2), "valu->permlane"
                if c.get("dpp") and vs(pd) & c["src"]: need, why = max(need, 2), "valu->dpp"
                if c.get("rfl") and vs(pd) & c["src"]: need, why = max(need, 1), "valu->readlane"
                if p.get("trans") and c["cls"] == "valu" and not c.get("trans") and vs(pd) & c["src"]: need, why = max(need, 1), "trans->valu"
                sp = {r for r in pd if r[0] == "s" or r == "vcc"}
                if sp and c["cls"] == "vmem" and sp & c["src"]: need, why = max(need, 5), "valu sgpr->vmem"
                if sp and c["cls"] == "valu" and sp & c["src"]: need, why = max(need, 2), "valu sgpr->valu"
            if p["cls"] == "mfma":
                n = {4: (8, 6, 3), 8: (12, 10, 7)}[p["passes"]]
                if c["cls"] == "mfma":
                    if p["dst"] & c["srcAB"]: need, why = n[0], "mfma D->mfma AB"
                    elif p["dst"] & c["srcC"] and not (p["dst"] == c["srcC"] and p["passes"] == c["passes"]): need, why = n[1], "mfma D->mfma C overlap"
                    elif p["dst"] & c["dst"] and not (p["dst"] == c["srcC"]): need, why = n[1], "mfma D WAW"
                elif c["cls"] in ("valu", "ds", "vmem"):
                    if p["dst"] & (c["src"] | c["dst"]): need, why = n[0], "mfma D->valu/mem"
                    elif c["cls"] == "valu" and p["srcC"] & c["dst"]: need, why = n[2], "mfma C WAR"
            if p["cls"] == "salu" and "m0" in p["dst"] and c.get("dma"): need, why = 1, "m0->dma"
            if p.get("wide") and c["cls"] in ("valu",) and p["wide"] & c["dst"]: need, why = 2, "wide store WAR"
            if p.get("wide") and c["cls"] in ("ds", "vmem", "mfma") and p["wide"] & c["dst"]: need, why = 1, "wide store WAR"
            if need > dist:
                probs.append(f"{why}: need {need} have {dist}: [{p['line']}] -> [{c['line']}]")
            dist += states(i)
            if dist >= 20: break
    return probs

def kernel_text(name, body, vgpr, sgpr, accum):
    return f""".text
.globl {name}
.p2align 8
.type {name},@function
{name}:
{body}
.section .rodata,"a"
.p2align 6
.amdhsa_kernel {name}
  .amdhsa_next_free_vgpr {vgpr}
  .amdhsa_next_free_sgpr {sgpr}
  .amdhsa_accum_offset {accum}
  .amdhsa_group_segment_fixed_size 0
  .amdhsa_kernarg_size 104
  .amdhsa_user_sgpr_count 2
  .amdhsa_user_sgpr_kernarg_segment_ptr 1
  .amdhsa_system_sgpr_workgroup_id_x 1
.end_amdhsa_kernel
"""

def file_text(launch_lines, kernels):
    s = HEADER
    for l in launch_lines:
        s += l + "\n"
    s += '.amdgcn_target "amdgcn-amd-amdhsa--gfx950"\n'
    for k in kernels:
        s += k
    return s
```

```python
import sys, math, struct
sys.path.insert(0, "gen")
from asmlib import *

def f2u(x): return struct.unpack("<I", struct.pack("<f", x))[0]
CSCALE = f2u(math.log2(math.e) / math.sqrt(128.0))

XB = 65536
PB = 131072
STM = PB + 24576
STS = STM + 1536
LDS_BYTES = 163840
O_BYTES = 2 * 8 * 32 * 24576
STAMP_OFF = 64 << 20

class K1:
    def __init__(self, stamps=False, kvpol=" nt", opt=None):
        self.a = Asm(); self.stamps = stamps; self.kvpol = kvpol; self.nst = 0
        self.opt = opt or {}
    def stamp(self):
        if not self.stamps: return
        a = self.a
        r = 60 + 2 * self.nst; self.nst += 1
        assert r + 1 <= 99
        a(f"s_memrealtime s[{r}:{r+1}]\ns_waitcnt lgkmcnt(0)"); a.lgq = []

    V_LIN = 1; V_KSRC = 2; V_VSRC = 6; V_WSRC = 7; V_XSRC = 8; V_KA = 12; V_WA = 20; V_VA = 22
    V_PW = 24; V_PR = 25; V_STW = 26; V_STR = 27; V_OST = 28; V_M = 29
    V_F = 32
    V_S = 64
    V_KL = 128
    A_Q = 0; A_O = 192; A_F = 240

    def S(self, g, i): return self.V_S + (g * 3 + i) * 16

    def setup(self):
        a = self.a
        a(f"""
        s_cmp_ge_u32 s2, 256
        s_cbranch_scc1 L_k1_end
        """)
        self.stamp()
        a(f"""
        s_and_b32 s3, s2, 7
        s_lshr_b32 s34, s2, 3
        s_lshr_b32 s35, s3, 2
        s_mul_i32 s36, s35, 40
        s_add_u32 s38, s0, s36
        s_addc_u32 s39, s1, 0
        s_load_dwordx8 s[40:47], s[38:39], 0
        s_load_dwordx2 s[48:49], s[0:1], 96
        v_lshrrev_b32 v32, 6, v0
        v_and_b32 v33, 63, v0
        v_readfirstlane_b32 s24, v32
        s_and_b32 s36, s3, 3
        s_lshl_b32 s36, s36, 1
        s_lshr_b32 s37, s34, 3
        s_lshl_b32 s37, s37, 3
        s_add_u32 s36, s36, s37
        s_and_b32 s37, s34, 7
        """)
        a(f"""
        s_lshl_b32 s25, s37, 5
        s_add_u32 s25, s25, s36
        s_lshl_b32 s50, s35, 8
        s_add_u32 s50, s50, s25
        s_mul_i32 s33, s50, 24576
        s_mul_i32 s50, s24, 6144
        s_add_u32 s33, s33, s50
        s_lshl_b32 s25, s25, 17
        s_lshl_b32 s50, s24, 13
        s_add_u32 s25, s25, s50
        s_lshl_b32 s28, s24, 15
        s_mov_b32 s29, {CSCALE:#x}
        s_mul_i32 s30, s37, 98304
        s_lshl_b32 s31, s36, 8
        s_lshl_b32 s50, s24, 7
        s_add_u32 s31, s31, s50
        s_lshl_b32 s32, s24, 14
        s_lshl_b32 s27, s24, 10
        s_add_u32 s27, s27, {XB}
        """)
        a(f"""
        v_lshrrev_b32 v34, 4, v33
        v_and_b32 v35, 15, v33
        v_lshrrev_b32 v36, 5, v33
        v_and_b32 v37, 31, v33
        v_lshlrev_b32 v38, 4, v33
        """)
        a(f"""
        s_lshl_b32 s50, s24, 2
        v_add_u32 v39, s50, v34
        v_xor_b32 v40, v35, v39
        v_lshlrev_b32 v40, 4, v40
        v_lshl_add_u32 v{self.V_XSRC}, v39, 10, v40
        """)
        a(f"""
        v_lshrrev_b32 v39, 3, v33
        v_and_b32 v40, 7, v33
        v_and_b32 v41, 1, v34
        v_lshlrev_b32 v41, 2, v41
        v_xor_b32 v40, v40, v41
        v_lshlrev_b32 v40, 4, v40
        v_lshl_add_u32 v{self.V_WSRC}, v39, 13, v40
        """)
        for ii in range(4):
            a(f"""
            v_add_u32 v39, {4*ii}, v34
            v_xor_b32 v39, v35, v39
            v_lshlrev_b32 v39, 4, v39
            v_lshl_add_u32 v{self.V_KSRC+ii}, v34, 8, v39
            """)
        a("s_waitcnt lgkmcnt(0)")
        a(f"""
        s_mov_b32 s4, s40
        s_mov_b32 s5, s41
        s_mov_b32 s6, 786432
        s_mov_b32 s7, 0x20000
        s_mov_b32 s8, s46
        s_mov_b32 s9, s47
        s_mov_b32 s10, 4194304
        s_mov_b32 s11, 0x20000
        s_mov_b32 s12, s42
        s_mov_b32 s13, s43
        s_mov_b32 s14, 33554432
        s_mov_b32 s15, 0x20000
        s_mov_b32 s16, s44
        s_mov_b32 s17, s45
        s_mov_b32 s18, 33554432
        s_mov_b32 s19, 0x20000
        s_mov_b32 s20, s48
        s_mov_b32 s21, s49
        s_mov_b32 s22, {O_BYTES}
        s_mov_b32 s23, 0x20000
        """)
    def setup2(self):
        a = self.a
        a(f"""
        v_lshlrev_b32 v39, 2, v34
        v_xor_b32 v39, v35, v39
        v_lshlrev_b32 v39, 4, v39
        v_lshl_add_u32 v{self.V_VSRC}, v34, 8, v39
        v_add_u32 v{self.V_LIN}, s28, v38
        """)
        for j in range(8):
            a(f"""
            v_add_u32 v39, {2*j}, v36
            v_xor_b32 v39, v35, v39
            v_lshlrev_b32 v39, 4, v39
            v_lshl_add_u32 v39, v37, 8, v39
            v_add_u32 v{self.V_KA+j}, {XB}, v39
            """)
        a(f"""
        v_lshrrev_b32 v39, 2, v35
        v_lshl_add_u32 v40, v36, 3, v39
        v_lshlrev_b32 v40, 7, v40
        v_lshrrev_b32 v41, 3, v35
        v_lshl_add_u32 v40, v41, 6, v40
        v_and_b32 v41, 1, v34
        v_lshl_add_u32 v40, v41, 5, v40
        v_and_b32 v42, 3, v35
        v_lshl_add_u32 v40, v42, 3, v40
        v_add_u32 v{self.V_WA}, s32, v40
        v_xor_b32 v{self.V_WA+1}, 64, v{self.V_WA}
        """)
        a(f"""
        v_lshl_add_u32 v40, v36, 2, v39
        v_lshlrev_b32 v40, 8, v40
        v_xor_b32 v43, s24, v39
        v_lshl_add_u32 v40, v43, 6, v40
        v_lshl_add_u32 v40, v41, 5, v40
        v_lshl_add_u32 v{self.V_VA}, v42, 3, v40
        v_add_u32 v{self.V_VA+1}, 0x10000, v{self.V_VA}
        """)
        a(f"""
        s_mul_i32 s50, s24, 6144
        s_add_u32 s50, s50, {PB}
        v_add_u32 v{self.V_PW}, s50, v38
        v_add_u32 v{self.V_PR}, {PB}, v38
        v_lshlrev_b32 v40, 4, v37
        v_add_u32 v{self.V_STR}, {STM}, v40
        s_lshl_b32 s50, s24, 2
        v_add_u32 v{self.V_STW}, s50, v{self.V_STR}
        v_lshlrev_b32 v40, 4, v35
        v_lshl_add_u32 v40, v36, 8, v40
        v_lshl_add_u32 v{self.V_OST}, v41, 10, v40
        """)
        a(f"""
        v_mov_b32 v9, v38
        v_lshlrev_b32 v40, 4, v37
        v_lshl_add_u32 v40, v36, 3, v40
        v_add_u32 v10, s32, v40
        """)

    def ld_x(self, kc, m):
        a = self.a
        a(f"s_add_u32 m0, s27, {kc*24576 + m*4096}\ns_add_u32 s26, s30, {m*16384 + kc*256}")
        a.vm(f"buffer_load_dwordx4 v{self.V_XSRC}, s[4:7], s26 offen lds", f"x{kc}")
    def ld_wq(self, ks):
        a = self.a
        for e in range(2):
            a(f"s_add_u32 m0, s32, {(ks%8)*2048 + e*1024}\ns_add_u32 s26, s31, {(ks*16 + e*8)*8192}")
            a.vm(f"buffer_load_dwordx4 v{self.V_WSRC}, s[8:11], s26 offen lds", f"wq{ks}")
    def ld_kreg(self, n):
        a = self.a
        g, i = n >> 3, n & 7
        r = self.V_KL + g * 32 + i * 4
        a(f"s_add_u32 s26, s25, {g*32768 + (i>>2)*4096}")
        a.vm(f"buffer_load_dwordx4 {vr(r,4)}, v{self.V_KSRC+(i&3)}, s[12:15], s26 offen offset:{(i&3)*1024}{self.kvpol}", f"K0_{g}")
    def ld_tile(self, kind, item, g, lo=0, hi=8):
        a = self.a
        srd = "s[12:15]" if kind == "K" else "s[16:19]"
        for i in range(lo, hi):
            if i == lo or i == 4:
                a(f"s_add_u32 m0, s28, {g*8192 + (i>>2)*4096}\ns_add_u32 s26, s25, {item*131072 + g*32768 + (i>>2)*4096}")
            vo = self.V_KSRC + (i & 3) if kind == "K" else self.V_VSRC
            a.vm(f"buffer_load_dwordx4 v{vo}, {srd}, s26 offen offset:{(i&3)*1024}{self.kvpol} lds", f"{kind}{item}_{g}")

    def q_issue(self, tau):
        kskip = self.opt.get("kskip", 2)
        if tau < 32: self.ld_wq(tau)
        c = (tau >> 3) + 1
        if c <= 3 and 1 <= (tau & 7) <= 6: self.ld_x(c, (tau & 7) - 1)
        n = tau - kskip
        if 0 <= n < 32: self.ld_kreg(n); self.kissued = n + 1

    def q_reads(self, ks):
        a = self.a
        b = 64 + (ks & 1) * 20
        for t in range(2):
            for u in range(2):
                a.ds(f"ds_read_b64_tr_b16 {vr(b + t*4 + u*2, 2)}, v{self.V_WA+t} offset:{(ks%8)*2048 + u*512}", f"qr{ks}")
        kc, jj = ks >> 3, ks & 7
        for i in range(3):
            a.ds(f"ds_read_b128 {vr(b + 8 + i*4, 4)}, v{self.V_KA+jj} offset:{(kc&1)*24576 + i*8192}", f"qr{ks}")

    def qphase(self):
        a = self.a
        self.kissued = 0
        for m in range(6): self.ld_x(0, m)
        self.q_issue(0)
        self.setup2()
        for tau in range(1, 7): self.q_issue(tau)
        a.wait(vm=["x0", "wq0"])
        a("s_barrier")
        self.stamp()
        self.q_reads(0)
        for ks in range(32):
            self.q_issue(ks + 7)
            if ks + 1 < 32:
                a.wait(vm=[f"wq{ks+1}", f"x{(ks+1)>>3}"])
                if (ks + 1) % 8 == 0: a("s_barrier")
                if ks + 1 == 16:
                    for j in range(8): a(f"v_add_u32 v{self.V_KA+j}, 49152, v{self.V_KA+j}")
                self.q_reads(ks + 1)
            a.wait(lg=f"qr{ks}")
            b = 64 + (ks & 1) * 20
            for t in range(2):
                for i in range(3):
                    acc = ar((t * 3 + i) * 16, 16)
                    a(f"v_mfma_f32_32x32x16_bf16 {acc}, {vr(b + t*4, 4)}, {vr(b + 8 + i*4, 4)}, {acc if ks else 0}")
        while self.kissued < 32:
            self.ld_kreg(self.kissued); self.kissued += 1
        a(f"s_sub_u32 s50, s28, {XB + 49152}")
        for j in range(8): a(f"v_add_u32 v{self.V_KA+j}, s50, v{self.V_KA+j}")
        a.nop(4)
        self.stamp()
        for t in range(2):
            for i in range(3):
                tb = 64 + ((t * 3 + i) & 1) * 24
                for r in range(16): a(f"v_accvgpr_read_b32 v{tb+r}, a{(t*3+i)*16 + r}")
                for k in range(8): a(f"v_cvt_pk_bf16_f32 v{tb+16+k}, v{tb+2*k}, v{tb+2*k+1}")
                for u in range(2):
                    for pc in range(2):
                        a.ds(f"ds_write_b64 v10, {vr(tb + 16 + u*4 + pc*2, 2)} offset:{((t*2+u)*3+i)*1024 + pc*512}", "qw")
        a.wait(lg="all")
        a("s_barrier")
        for hd in range(2):
            for sp in range(8):
                for i in range(3):
                    a.ds(f"ds_read_b128 {ar(hd*96 + (sp*3+i)*4, 4)}, v9 offset:{(2*hd + (sp>>2))*16384 + ((sp&3)*3+i)*1024}", "qx")
        a.wait(lg="all")
        a("s_barrier")
        self.stamp()

    def qk_tile(self, item, g):
        a = self.a
        if item == 0:
            a.wait(vm=f"K0_{g}")
            for i in range(8):
                a.ds(f"ds_write_b128 v{self.V_LIN}, {vr(self.V_KL + g*32 + i*4, 4)} offset:{g*8192 + i*1024}", "kw")
        else:
            a.wait(vm=f"K{item}_{g}")
        for j in range(8):
            a.ds(f"ds_read_b128 {vr(self.V_F + j*4, 4)}, v{self.V_KA+j} offset:{g*8192}", f"kf{j}")
        for j in range(8):
            a.wait(lg=f"kf{j}")
            for i in range(3):
                d = vr(self.S(g, i), 16)
                a(f"v_mfma_f32_32x32x16_bf16 {d}, {vr(self.V_F + j*4, 4)}, {ar(item*96 + (j*3+i)*4, 4)}, {d if j else 0}")
    def tile_max(self, g):
        a = self.a
        for k in range(8):
            for i in range(3):
                s = self.S(g, i); m = self.V_M + i
                if g == 0:
                    if k == 0: a(f"v_max3_f32 v{m}, v{s}, v{s+1}, v{s+2}")
                    elif k < 7: a(f"v_max3_f32 v{m}, v{m}, v{s+2*k+1}, v{s+2*k+2}")
                    else: a(f"v_max_f32 v{m}, v{m}, v{s+15}")
                else:
                    a(f"v_max3_f32 v{m}, v{m}, v{s+2*k}, v{s+2*k+1}")

    def softmax(self, item):
        a = self.a
        F = self.V_F
        for i in range(3): a(f"v_mov_b32 v{F+i}, v{self.V_M+i}")
        a.nop(1)
        for i in range(3): a(f"v_permlane32_swap_b32 v{self.V_M+i}, v{F+i}")
        for i in range(3): a(f"v_max_f32 v{self.V_M+i}, v{self.V_M+i}, v{F+i}")
        for i in range(3): a.ds(f"ds_write_b32 v{self.V_STW}, v{self.V_M+i} offset:{i*512}", "st")
        a.wait(lg="all")
        a("s_barrier")
        for i in range(3): a.ds(f"ds_read_b128 {vr(F + 4 + i*4, 4)}, v{self.V_STR} offset:{i*512}", f"sm{i}")
        for i in range(3):
            a.wait(lg=f"sm{i}")
            b = F + 4 + i * 4
            a(f"v_max3_f32 v{b}, v{b}, v{b+1}, v{b+2}\nv_max_f32 v{b}, v{b}, v{b+3}\nv_mul_f32 v{F+i}, s29, v{b}")
        self.stamp()
        L = F + 16
        for g in range(4):
            for i in range(3):
                s = self.S(g, i)
                for r in range(16): a(f"v_fma_f32 v{s+r}, v{s+r}, s29, -v{F+i}")
                for r in range(16): a(f"v_exp_f32 v{s+r}, v{s+r}")
                for k in range(8):
                    if g == 0 and k == 0:
                        a(f"v_add_f32 v{L+i}, v{s}, v{s+1}")
                    else:
                        a(f"v_add_f32 v{L+i}, v{L+i}, v{s+2*k}\nv_add_f32 v{L+i}, v{L+i}, v{s+2*k+1}")
                    a(f"v_cvt_pk_bf16_f32 v{s+k}, v{s+2*k}, v{s+2*k+1}")
            if g == self.opt.get("v3at", 1): self.ld_tile("V", item, 3)
        for i in range(3): a(f"v_mov_b32 v{F+i}, v{L+i}")
        a.nop(1)
        for i in range(3): a(f"v_permlane32_swap_b32 v{L+i}, v{F+i}")
        for i in range(3): a(f"v_add_f32 v{L+i}, v{L+i}, v{F+i}")
        for i in range(3): a.ds(f"ds_write_b32 v{self.V_STW}, v{L+i} offset:{1536 + i*512}", "st")

    def pv_buf(self, n):
        k = n % 3
        return [("v", self.V_F), ("v", self.V_F + 16), ("a", self.A_F)][k]
    def pv_reads(self, g, n):
        a = self.a
        wsrc, s = n >> 1, n & 1
        f, b = self.pv_buf(n)
        for u in range(2):
            a.ds(f"ds_read_b64_tr_b16 {vr(b + 2*u, 2, f)}, v{self.V_VA + (wsrc>>1)} offset:{(wsrc&1)*32768 + g*8192 + (16*s + 8*u)*256}", f"pv{n}")
        for i in range(3):
            a.ds(f"ds_read_b128 {vr(b + 4 + 4*i, 4, f)}, v{self.V_PR} offset:{wsrc*6144 + (s*3+i)*1024}", f"pv{n}")
    def pv_step(self, item, g):
        a = self.a
        for s in range(2):
            for i in range(3):
                a.ds(f"ds_write_b128 v{self.V_PW}, {vr(self.S(g, i) + 4*s, 4)} offset:{(s*3+i)*1024}", "pw")
        a.wait(vm=f"V{item}_{g}", lg="all")
        a("s_barrier")
        self.pv_reads(g, 0); self.pv_reads(g, 1)
        for n in range(8):
            if n + 2 < 8: self.pv_reads(g, n + 2)
            a.wait(lg=f"pv{n}")
            f, b = self.pv_buf(n)
            for i in range(3):
                d = ar(self.A_O + i * 16, 16)
                a(f"v_mfma_f32_32x32x16_bf16 {d}, {vr(b, 4, f)}, {vr(b + 4 + 4*i, 4, f)}, {d if (g or n) else 0}")
        if not (item == 1 and g == 3):
            a("s_barrier")
        if item == 0: self.ld_tile("K", 1, g)

    def epilogue(self, item):
        a = self.a
        F = self.V_F
        T = self.V_S
        for i in range(3): a.ds(f"ds_read_b128 {vr(T + i*4, 4)}, v{self.V_STR} offset:{1536 + i*512}", f"sm{i}")
        for i in range(3):
            a.wait(lg=f"sm{i}")
            b = T + i * 4
            a(f"v_add_f32 v{b}, v{b}, v{b+1}\nv_add_f32 v{b+2}, v{b+2}, v{b+3}\nv_add_f32 v{b}, v{b}, v{b+2}")
        for i in range(3): a(f"v_rcp_f32 v{T+12+i}, v{T+i*4}")
        a.nop(4)
        for i in range(3):
            tb = T + 16 + i * 24
            for r in range(16): a(f"v_accvgpr_read_b32 v{tb+r}, a{self.A_O + i*16 + r}")
            for r in range(16): a(f"v_mul_f32 v{tb+r}, v{tb+r}, v{T+12+i}")
            for k in range(8): a(f"v_cvt_pk_bf16_f32 v{tb+16+k}, v{tb+2*k}, v{tb+2*k+1}")
            a(f"s_add_u32 s26, s33, {item*24576 + i*2048}")
            for sec in range(2):
                a.vm(f"buffer_store_dwordx4 {vr(tb + 16 + sec*4, 4)}, v{self.V_OST}, s[20:23], s26 offen offset:{sec*512}", f"O{item}")

    def item(self, item):
        a = self.a
        for g in range(4):
            self.qk_tile(item, g)
            if g < 3: self.ld_tile("V", item, g)
            else: a.nop(12)
            self.tile_max(g)
        self.stamp()
        self.softmax(item)
        self.stamp()
        for g in range(4): self.pv_step(item, g)
        self.stamp()
        self.epilogue(item)
        self.stamp()

    def finish(self):
        a = self.a
        if self.stamps:
            a.wait(vm="all")
            self.stamp()
            a(f"""
            s_lshl_b32 s50, s2, 2
            s_add_u32 s50, s50, s24
            s_lshl_b32 s50, s50, 7
            s_add_u32 s50, s50, {STAMP_OFF}
            v_mov_b32 v32, s50
            s_getreg_b32 s51, hwreg(HW_REG_XCC_ID)
            v_mov_b32 v33, s51
            global_store_dword v32, v33, s[48:49] offset:124
            """)
            for k in range(self.nst):
                a(f"v_mov_b32 v33, s{60+2*k}\nglobal_store_dword v32, v33, s[48:49] offset:{4*k}")
        a.label("L_k1_end")
        a("s_endpgm")

    def build(self):
        self.setup()
        self.qphase()
        self.item(0)
        self.item(1)
        self.finish()
        return self.a.text()

class K2:
    D = 4
    def __init__(self, stamps=False, opt=None):
        self.a = Asm(); self.stamps = stamps; self.opt = opt or {}
    def build(self):
        a = self.a; D = self.D
        a(f"""
        s_cmp_ge_u32 s2, 256
        s_cbranch_scc1 L_k2_end
        s_and_b32 s3, s2, 7
        s_lshr_b32 s34, s2, 3
        s_lshr_b32 s35, s3, 2
        s_mul_i32 s36, s35, 40
        s_add_u32 s38, s0, s36
        s_addc_u32 s39, s1, 0
        s_load_dwordx2 s[40:41], s[38:39], 32
        s_load_dwordx2 s[42:43], s[0:1], 80
        s_load_dwordx2 s[48:49], s[0:1], 96
        v_lshrrev_b32 v32, 6, v0
        v_and_b32 v33, 63, v0
        v_readfirstlane_b32 s24, v32
        s_lshr_b32 s36, s3, 1
        s_and_b32 s36, s36, 1
        s_lshl_b32 s36, s36, 3
        s_and_b32 s37, s34, 7
        s_add_u32 s36, s36, s37
        s_and_b32 s37, s3, 1
        s_lshl_b32 s37, s37, 2
        s_lshr_b32 s50, s34, 3
        s_add_u32 s37, s37, s50
        """)
        a(f"""
        s_lshr_b32 s50, s36, 1
        s_lshl_b32 s51, s35, 3
        s_add_u32 s50, s50, s51
        s_lshl_b32 s50, s50, 5
        s_lshl_b32 s51, s24, 3
        s_add_u32 s50, s50, s51
        s_mul_i32 s25, s50, 24576
        s_and_b32 s50, s36, 1
        s_mul_i32 s50, s50, 3072
        s_add_u32 s25, s25, s50
        s_lshl_b32 s27, s24, 20
        s_lshl_b32 s50, s37, 7
        s_add_u32 s27, s27, s50
        s_mul_i32 s28, s24, {D*4096}
        s_mul_i32 s30, s36, {48*2048}
        s_lshl_b32 s51, s35, 10
        s_add_u32 s30, s30, s51
        s_add_u32 s30, s30, s50
        """)
        a(f"""
        v_lshlrev_b32 v1, 4, v33
        v_lshrrev_b32 v34, 4, v33
        v_and_b32 v35, 15, v33
        v_lshrrev_b32 v36, 3, v33
        v_and_b32 v37, 7, v33
        v_lshlrev_b32 v38, 1, v34
        v_xor_b32 v37, v37, v38
        v_lshlrev_b32 v37, 4, v37
        v_lshl_add_u32 v2, v36, 10, v37
        v_add_u32 v3, 7168, v2
        v_add_u32 v4, 14336, v2
        v_add_u32 v5, 21504, v2
        """)
        a(f"""
        v_lshrrev_b32 v36, 1, v34
        v_and_b32 v37, 1, v34
        v_lshrrev_b32 v38, 2, v35
        v_lshl_add_u32 v39, v36, 4, v38
        v_lshl_add_u32 v39, v37, 2, v39
        v_lshlrev_b32 v39, 7, v39
        v_and_b32 v40, 3, v35
        v_lshl_add_u32 v39, v40, 3, v39
        v_add_u32 v39, s28, v39
        v_lshrrev_b32 v40, 3, v35
        v_lshl_add_u32 v40, v37, 1, v40
        """)
        for nt in range(4):
            a(f"v_xor_b32 v41, {nt}, v40\nv_lshl_add_u32 v{6+nt}, v41, 5, v39")
        a(f"""
        s_waitcnt lgkmcnt(0)
        s_mov_b32 s4, s48
        s_mov_b32 s5, s49
        s_mov_b32 s6, {O_BYTES}
        s_mov_b32 s7, 0x20000
        s_mov_b32 s8, s40
        s_mov_b32 s9, s41
        s_mov_b32 s10, 4194304
        s_mov_b32 s11, 0x20000
        s_mov_b32 s12, s42
        s_mov_b32 s13, s43
        s_mov_b32 s14, 1572864
        s_mov_b32 s15, 0x20000
        """)
        OB = 64
        AF = 44
        ACC = 160
        def issue(ks):
            sl = ks % D
            a(f"s_add_u32 m0, s28, {sl*4096}\ns_add_u32 s26, s27, {ks*32768}")
            for jj in range(4):
                a.vm(f"buffer_load_dwordx4 v{2+jj}, s[8:11], s26 offen offset:{jj*1024} lds", f"k{ks}")
            a(f"s_add_u32 s26, s25, {ks*6144}")
            for i in range(3):
                a.vm(f"buffer_load_dwordx4 {vr(OB + sl*12 + i*4, 4)}, v1, s[4:7], s26 offen offset:{i*1024}", f"k{ks}")
        def reads(ks):
            sl = ks % D; fb = [44, 128][ks & 1]
            for nt in range(4):
                for u in range(2):
                    a.ds(f"ds_read_b64_tr_b16 {vr(fb + nt*4 + u*2, 2)}, v{6+nt} offset:{sl*4096 + u*1024}", f"r{ks}")
        for ks in range(D - 1): issue(ks)
        a.wait(vm="k0"); reads(0)
        for ks in range(32):
            if ks + D - 1 < 32: issue(ks + D - 1)
            if ks + 1 < 32:
                a.wait(vm=f"k{ks+1}"); reads(ks + 1)
            a.wait(lg=f"r{ks}")
            sl = ks % D; fb = [44, 128][ks & 1]
            for nt in range(4):
                for i in range(3):
                    d = vr(ACC + (nt * 3 + i) * 4, 4)
                    a(f"v_mfma_f32_16x16x32_bf16 {d}, {vr(fb + nt*4, 4)}, {vr(OB + sl*12 + i*4, 4)}, {d if ks else 0}")
        a(f"""
        s_mul_i32 s50, s24, 13056
        v_mul_u32_u24 v10, 272, v35
        v_lshl_add_u32 v10, v34, 4, v10
        v_add_u32 v10, s50, v10
        v_lshrrev_b32 v11, 3, v0
        v_and_b32 v12, 7, v0
        v_mul_u32_u24 v13, 272, v11
        v_lshl_add_u32 v13, v12, 5, v13
        v_lshlrev_b32 v14, 11, v11
        v_lshl_add_u32 v14, v12, 4, v14
        s_barrier
        """)
        for nt in range(4):
            for i in range(3):
                a.ds(f"ds_write_b128 v10, {vr(ACC + (nt*3+i)*4, 4)} offset:{i*16*272 + nt*64}", "pw")
        a.wait(lg="all")
        a("s_barrier")
        for rnd in range(2):
            if rnd == 1:
                a("s_cmp_ge_u32 s24, 2\ns_cbranch_scc1 L_k2_end")
            for w in range(4):
                for hf in range(2):
                    a.ds(f"ds_read_b128 {vr(64 + (w*2+hf)*4, 4)}, v13 offset:{w*13056 + rnd*32*272 + hf*16}", "rd")
            a.wait(lg="all")
            for e in range(8):
                a(f"v_add_f32 v{64+e}, v{64+e}, v{72+e}\nv_add_f32 v{80+e}, v{80+e}, v{88+e}")
            for e in range(8): a(f"v_add_f32 v{64+e}, v{64+e}, v{80+e}")
            for k in range(4): a(f"v_cvt_pk_bf16_f32 v{100+rnd*4+k}, v{64+2*k}, v{64+2*k+1}")
            a(f"s_add_u32 s26, s30, {rnd*32*2048}")
            a.vm(f"buffer_store_dwordx4 {vr(100+rnd*4, 4)}, v14, s[12:15], s26 offen", "st")
        a.label("L_k2_end")
        a("s_endpgm")
        return a.text()

def gen(fname, stamps=False, kvpol=" nt", opt=None):
    b1 = K1(stamps, kvpol, opt).build()
    b2 = K2(stamps, opt).build()
    for nm, b in (("k1", b1), ("k2", b2)):
        for p in check_hazards(b): print("HAZARD", nm, p)
    k1 = kernel_text("attn_kernel", b1, 512, 102, 256)
    k2 = kernel_text("proj_kernel", b2, 208, 64, 208)
    open(fname, "w").write(file_text([f"; @launch kernel=attn_kernel grid=(256,1,1) block=(256,1,1) lds={LDS_BYTES}",
                                      f"; @launch kernel=proj_kernel grid=(256,1,1) block=(256,1,1) lds=98304"], [k1, k2]))

if __name__ == "__main__":
    gen("g1.s")
    gen("g1_st.s", stamps=True)
```

```python
import sys, math, struct
sys.path.insert(0, "gen")
from asmlib import *

def f2u(x): return struct.unpack("<I", struct.pack("<f", x))[0]
CSCALE = f2u(math.log2(math.e) / math.sqrt(128.0))

XB = 65536
PB = 131072
STM = PB + 24576
STS = STM + 1536
LDS_BYTES = 163840
O_BYTES = 2 * 8 * 32 * 24576
STAMP_OFF = 64 << 20

class K1:
    def __init__(self, stamps=False, kvpol=" nt", opt=None):
        self.a = Asm(); self.stamps = stamps; self.kvpol = kvpol; self.nst = 0
        self.opt = opt or {}
    def stamp(self):
        if not self.stamps: return
        a = self.a
        r = 60 + 2 * self.nst; self.nst += 1
        assert r + 1 <= 99
        a(f"s_memrealtime s[{r}:{r+1}]\ns_waitcnt lgkmcnt(0)"); a.lgq = []

    V_LIN = 1; V_KSRC = 2; V_VSRC = 6; V_WSRC = 7; V_XSRC = 8; V_KA = 12; V_WA = 20; V_VA = 22
    V_PW = 24; V_PR = 25; V_STW = 26; V_STR = 27; V_OST = 28; V_M = 29
    V_F = 32
    V_S = 64
    V_KL = 128
    A_Q = 0; A_O = 192; A_F = 240

    def S(self, g, i): return self.V_S + (g * 3 + i) * 16

    def setup(self):
        a = self.a
        a(f"""
        s_cmp_ge_u32 s2, 256
        s_cbranch_scc1 L_k1_end
        """)
        self.stamp()
        a(f"""
        s_and_b32 s3, s2, 7
        s_lshr_b32 s34, s2, 3
        s_lshr_b32 s35, s3, 2
        s_mul_i32 s36, s35, 40
        s_add_u32 s38, s0, s36
        s_addc_u32 s39, s1, 0
        s_load_dwordx8 s[40:47], s[38:39], 0
        s_load_dwordx2 s[48:49], s[0:1], 96
        v_lshrrev_b32 v32, 6, v0
        v_and_b32 v33, 63, v0
        v_readfirstlane_b32 s24, v32
        s_and_b32 s36, s3, 3
        s_lshl_b32 s36, s36, {1 if self.opt.get('map','xh2')=='xh2' else 3}
        s_lshr_b32 s37, s34, 3
        s_lshl_b32 s37, s37, {3 if self.opt.get('map','xh2')=='xh2' else 1}
        s_add_u32 s36, s36, s37
        s_and_b32 s37, s34, 7
        """)
        a(f"""
        s_lshl_b32 s25, s37, 5
        s_add_u32 s25, s25, s36
        s_lshl_b32 s50, s35, 8
        s_add_u32 s50, s50, s25
        s_mul_i32 s33, s50, 24576
        s_mul_i32 s50, s24, 6144
        s_add_u32 s33, s33, s50
        s_lshl_b32 s25, s25, 17
        s_lshl_b32 s50, s24, 13
        s_add_u32 s25, s25, s50
        s_lshl_b32 s28, s24, 15
        s_mov_b32 s29, {CSCALE:#x}
        s_mul_i32 s30, s37, 98304
        s_lshl_b32 s31, s36, 8
        s_lshl_b32 s50, s24, 7
        s_add_u32 s31, s31, s50
        s_lshl_b32 s32, s24, 14
        s_lshl_b32 s27, s24, 10
        s_add_u32 s27, s27, {XB}
        """)
        a(f"""
        v_lshrrev_b32 v34, 4, v33
        v_and_b32 v35, 15, v33
        v_lshrrev_b32 v36, 5, v33
        v_and_b32 v37, 31, v33
        v_lshlrev_b32 v38, 4, v33
        """)
        a(f"""
        s_lshl_b32 s50, s24, 2
        v_add_u32 v39, s50, v34
        v_xor_b32 v40, v35, v39
        v_lshlrev_b32 v40, 4, v40
        v_lshl_add_u32 v{self.V_XSRC}, v39, 10, v40
        """)
        a(f"""
        v_lshrrev_b32 v39, 3, v33
        v_and_b32 v40, 7, v33
        v_and_b32 v41, 1, v34
        v_lshlrev_b32 v41, 2, v41
        v_xor_b32 v40, v40, v41
        v_lshlrev_b32 v40, 4, v40
        v_lshl_add_u32 v{self.V_WSRC}, v39, 13, v40
        """)
        for ii in range(4):
            a(f"""
            v_add_u32 v39, {4*ii}, v34
            v_xor_b32 v39, v35, v39
            v_lshlrev_b32 v39, 4, v39
            v_lshl_add_u32 v{self.V_KSRC+ii}, v34, 8, v39
            """)
        a("s_waitcnt lgkmcnt(0)")
        a(f"""
        s_mov_b32 s4, s40
        s_mov_b32 s5, s41
        s_mov_b32 s6, 786432
        s_mov_b32 s7, 0x20000
        s_mov_b32 s8, s46
        s_mov_b32 s9, s47
        s_mov_b32 s10, 4194304
        s_mov_b32 s11, 0x20000
        s_mov_b32 s12, s42
        s_mov_b32 s13, s43
        s_mov_b32 s14, 33554432
        s_mov_b32 s15, 0x20000
        s_mov_b32 s16, s44
        s_mov_b32 s17, s45
        s_mov_b32 s18, 33554432
        s_mov_b32 s19, 0x20000
        s_mov_b32 s20, s48
        s_mov_b32 s21, s49
        s_mov_b32 s22, {O_BYTES}
        s_mov_b32 s23, 0x20000
        """)
    def setup2(self):
        a = self.a
        a(f"""
        v_lshlrev_b32 v39, 2, v34
        v_xor_b32 v39, v35, v39
        v_lshlrev_b32 v39, 4, v39
        v_lshl_add_u32 v{self.V_VSRC}, v34, 8, v39
        v_add_u32 v{self.V_LIN}, s28, v38
        """)
        for j in range(8):
            a(f"""
            v_add_u32 v39, {2*j}, v36
            v_xor_b32 v39, v35, v39
            v_lshlrev_b32 v39, 4, v39
            v_lshl_add_u32 v39, v37, 8, v39
            v_add_u32 v{self.V_KA+j}, {XB}, v39
            """)
        a(f"""
        v_lshrrev_b32 v39, 2, v35
        v_lshl_add_u32 v40, v36, 3, v39
        v_lshlrev_b32 v40, 7, v40
        v_lshrrev_b32 v41, 3, v35
        v_lshl_add_u32 v40, v41, 6, v40
        v_and_b32 v41, 1, v34
        v_lshl_add_u32 v40, v41, 5, v40
        v_and_b32 v42, 3, v35
        v_lshl_add_u32 v40, v42, 3, v40
        v_add_u32 v{self.V_WA}, s32, v40
        v_xor_b32 v{self.V_WA+1}, 64, v{self.V_WA}
        """)
        a(f"""
        v_lshl_add_u32 v40, v36, 2, v39
        v_lshlrev_b32 v40, 8, v40
        v_xor_b32 v43, s24, v39
        v_lshl_add_u32 v40, v43, 6, v40
        v_lshl_add_u32 v40, v41, 5, v40
        v_lshl_add_u32 v{self.V_VA}, v42, 3, v40
        v_add_u32 v{self.V_VA+1}, 0x10000, v{self.V_VA}
        """)
        a(f"""
        s_mul_i32 s50, s24, 6144
        s_add_u32 s50, s50, {PB}
        v_add_u32 v{self.V_PW}, s50, v38
        v_add_u32 v{self.V_PR}, {PB}, v38
        v_lshlrev_b32 v40, 4, v37
        v_add_u32 v{self.V_STR}, {STM}, v40
        s_lshl_b32 s50, s24, 2
        v_add_u32 v{self.V_STW}, s50, v{self.V_STR}
        v_lshlrev_b32 v40, 4, v35
        v_lshl_add_u32 v40, v36, 8, v40
        v_lshl_add_u32 v{self.V_OST}, v41, 10, v40
        """)
        a(f"""
        v_mov_b32 v9, v38
        v_lshlrev_b32 v40, 4, v37
        v_lshl_add_u32 v40, v36, 3, v40
        v_add_u32 v10, s32, v40
        """)

    def ld_x(self, kc, m):
        a = self.a
        a(f"s_add_u32 m0, s27, {kc*24576 + m*4096}\ns_add_u32 s26, s30, {m*16384 + kc*256}")
        a.vm(f"buffer_load_dwordx4 v{self.V_XSRC}, s[4:7], s26 offen{self.opt.get('xpol','')} lds", f"x{kc}")
    def ld_wq(self, ks):
        a = self.a
        for e in range(2):
            a(f"s_add_u32 m0, s32, {(ks%8)*2048 + e*1024}\ns_add_u32 s26, s31, {(ks*16 + e*8)*8192}")
            a.vm(f"buffer_load_dwordx4 v{self.V_WSRC}, s[8:11], s26 offen{self.opt.get('wpol','')} lds", f"wq{ks}")
    def ld_kreg(self, n):
        a = self.a
        g, i = n >> 3, n & 7
        r = self.V_KL + g * 32 + i * 4
        a(f"s_add_u32 s26, s25, {g*32768 + (i>>2)*4096}")
        a.vm(f"buffer_load_dwordx4 {vr(r,4)}, v{self.V_KSRC+(i&3)}, s[12:15], s26 offen offset:{(i&3)*1024}{self.kvpol}", f"K0_{g}")
    def ld_tile(self, kind, item, g, lo=0, hi=8):
        a = self.a
        srd = "s[12:15]" if kind == "K" else "s[16:19]"
        for i in range(lo, hi):
            if i == lo or i == 4:
                a(f"s_add_u32 m0, s28, {g*8192 + (i>>2)*4096}\ns_add_u32 s26, s25, {item*131072 + g*32768 + (i>>2)*4096}")
            vo = self.V_KSRC + (i & 3) if kind == "K" else self.V_VSRC
            a.vm(f"buffer_load_dwordx4 v{vo}, {srd}, s26 offen offset:{(i&3)*1024}{self.kvpol} lds", f"{kind}{item}_{g}")

    def q_issue(self, tau):
        kskip = self.opt.get("kskip", 2)
        if tau < 32: self.ld_wq(tau)
        c = (tau >> 3) + 1
        if c <= 3 and 1 <= (tau & 7) <= 6: self.ld_x(c, (tau & 7) - 1)
        n = tau - kskip
        if 0 <= n < 32: self.ld_kreg(n); self.kissued = n + 1

    def q_reads(self, ks):
        a = self.a
        b = 64 + (ks & 1) * 20
        for t in range(2):
            for u in range(2):
                a.ds(f"ds_read_b64_tr_b16 {vr(b + t*4 + u*2, 2)}, v{self.V_WA+t} offset:{(ks%8)*2048 + u*512}", f"qr{ks}")
        kc, jj = ks >> 3, ks & 7
        for i in range(3):
            a.ds(f"ds_read_b128 {vr(b + 8 + i*4, 4)}, v{self.V_KA+jj} offset:{(kc&1)*24576 + i*8192}", f"qr{ks}")

    def qphase(self):
        a = self.a
        self.kissued = 0
        for m in range(6): self.ld_x(0, m)
        self.q_issue(0)
        self.setup2()
        for tau in range(1, 7): self.q_issue(tau)
        a.wait(vm=["x0", "wq0"])
        a("s_barrier")
        self.stamp()
        self.q_reads(0)
        for ks in range(32):
            self.q_issue(ks + 7)
            if ks + 1 < 32:
                a.wait(vm=[f"wq{ks+1}", f"x{(ks+1)>>3}"])
                if (ks + 1) % 8 == 0: a("s_barrier")
                if ks + 1 == 16:
                    for j in range(8): a(f"v_add_u32 v{self.V_KA+j}, 49152, v{self.V_KA+j}")
                self.q_reads(ks + 1)
            a.wait(lg=f"qr{ks}")
            b = 64 + (ks & 1) * 20
            for t in range(2):
                for i in range(3):
                    acc = ar((t * 3 + i) * 16, 16)
                    a(f"v_mfma_f32_32x32x16_bf16 {acc}, {vr(b + t*4, 4)}, {vr(b + 8 + i*4, 4)}, {acc if ks else 0}")
        while self.kissued < 32:
            self.ld_kreg(self.kissued); self.kissued += 1
        a(f"s_sub_u32 s50, s28, {XB + 49152}")
        for j in range(8): a(f"v_add_u32 v{self.V_KA+j}, s50, v{self.V_KA+j}")
        a.nop(4)
        self.stamp()
        for t in range(2):
            for i in range(3):
                tb = 64 + ((t * 3 + i) & 1) * 24
                for r in range(16): a(f"v_accvgpr_read_b32 v{tb+r}, a{(t*3+i)*16 + r}")
                for k in range(8): a(f"v_cvt_pk_bf16_f32 v{tb+16+k}, v{tb+2*k}, v{tb+2*k+1}")
                for u in range(2):
                    for pc in range(2):
                        a.ds(f"ds_write_b64 v10, {vr(tb + 16 + u*4 + pc*2, 2)} offset:{((t*2+u)*3+i)*1024 + pc*512}", "qw")
        a.wait(lg="all")
        a("s_barrier")
        for hd in range(2):
            for sp in range(8):
                for i in range(3):
                    a.ds(f"ds_read_b128 {ar(hd*96 + (sp*3+i)*4, 4)}, v9 offset:{(2*hd + (sp>>2))*16384 + ((sp&3)*3+i)*1024}", "qx")
        a.wait(lg="all")
        a("s_barrier")
        self.stamp()

    def qk_tile(self, item, g):
        a = self.a
        if item == 0:
            a.wait(vm=f"K0_{g}")
            for i in range(8):
                a.ds(f"ds_write_b128 v{self.V_LIN}, {vr(self.V_KL + g*32 + i*4, 4)} offset:{g*8192 + i*1024}", "kw")
        else:
            a.wait(vm=f"K{item}_{g}")
        for j in range(8):
            a.ds(f"ds_read_b128 {vr(self.V_F + j*4, 4)}, v{self.V_KA+j} offset:{g*8192}", f"kf{j}")
        for j in range(8):
            a.wait(lg=f"kf{j}")
            for i in range(3):
                d = vr(self.S(g, i), 16)
                a(f"v_mfma_f32_32x32x16_bf16 {d}, {vr(self.V_F + j*4, 4)}, {ar(item*96 + (j*3+i)*4, 4)}, {d if j else 0}")
    def tile_max(self, g):
        a = self.a
        for k in range(8):
            for i in range(3):
                s = self.S(g, i); m = self.V_M + i
                if g == 0:
                    if k == 0: a(f"v_max3_f32 v{m}, v{s}, v{s+1}, v{s+2}")
                    elif k < 7: a(f"v_max3_f32 v{m}, v{m}, v{s+2*k+1}, v{s+2*k+2}")
                    else: a(f"v_max_f32 v{m}, v{m}, v{s+15}")
                else:
                    a(f"v_max3_f32 v{m}, v{m}, v{s+2*k}, v{s+2*k+1}")

    def softmax(self, item):
        a = self.a
        F = self.V_F
        for i in range(3): a(f"v_mov_b32 v{F+i}, v{self.V_M+i}")
        a.nop(1)
        for i in range(3): a(f"v_permlane32_swap_b32 v{self.V_M+i}, v{F+i}")
        for i in range(3): a(f"v_max_f32 v{self.V_M+i}, v{self.V_M+i}, v{F+i}")
        for i in range(3): a.ds(f"ds_write_b32 v{self.V_STW}, v{self.V_M+i} offset:{i*512}", "st")
        a.wait(lg="all")
        a("s_barrier")
        for i in range(3): a.ds(f"ds_read_b128 {vr(F + 4 + i*4, 4)}, v{self.V_STR} offset:{i*512}", f"sm{i}")
        for i in range(3):
            a.wait(lg=f"sm{i}")
            b = F + 4 + i * 4
            a(f"v_max3_f32 v{b}, v{b}, v{b+1}, v{b+2}\nv_max_f32 v{b}, v{b}, v{b+3}\nv_mul_f32 v{F+i}, s29, v{b}")
        self.stamp()
        L = F + 16
        for g in range(4):
            for i in range(3):
                s = self.S(g, i)
                for r in range(16): a(f"v_fma_f32 v{s+r}, v{s+r}, s29, -v{F+i}")
                for r in range(16): a(f"v_exp_f32 v{s+r}, v{s+r}")
                for k in range(8):
                    if g == 0 and k == 0:
                        a(f"v_add_f32 v{L+i}, v{s}, v{s+1}")
                    else:
                        a(f"v_add_f32 v{L+i}, v{L+i}, v{s+2*k}\nv_add_f32 v{L+i}, v{L+i}, v{s+2*k+1}")
                    a(f"v_cvt_pk_bf16_f32 v{s+k}, v{s+2*k}, v{s+2*k+1}")
            if g == self.opt.get("v3at", 1): self.ld_tile("V", item, 3)
        for i in range(3): a(f"v_mov_b32 v{F+i}, v{L+i}")
        a.nop(1)
        for i in range(3): a(f"v_permlane32_swap_b32 v{L+i}, v{F+i}")
        for i in range(3): a(f"v_add_f32 v{L+i}, v{L+i}, v{F+i}")
        for i in range(3): a.ds(f"ds_write_b32 v{self.V_STW}, v{L+i} offset:{1536 + i*512}", "st")

    def pv_buf(self, n):
        k = n % 3
        return [("v", self.V_F), ("v", self.V_F + 16), ("a", self.A_F)][k]
    def pv_reads(self, g, n):
        a = self.a
        wsrc, s = n >> 1, n & 1
        f, b = self.pv_buf(n)
        for u in range(2):
            a.ds(f"ds_read_b64_tr_b16 {vr(b + 2*u, 2, f)}, v{self.V_VA + (wsrc>>1)} offset:{(wsrc&1)*32768 + g*8192 + (16*s + 8*u)*256}", f"pv{n}")
        for i in range(3):
            a.ds(f"ds_read_b128 {vr(b + 4 + 4*i, 4, f)}, v{self.V_PR} offset:{wsrc*6144 + (s*3+i)*1024}", f"pv{n}")
    def pv_step(self, item, g):
        a = self.a
        for s in range(2):
            for i in range(3):
                a.ds(f"ds_write_b128 v{self.V_PW}, {vr(self.S(g, i) + 4*s, 4)} offset:{(s*3+i)*1024}", "pw")
        a.wait(vm=f"V{item}_{g}", lg="all")
        a("s_barrier")
        self.pv_reads(g, 0); self.pv_reads(g, 1)
        for n in range(8):
            if n + 2 < 8: self.pv_reads(g, n + 2)
            a.wait(lg=f"pv{n}")
            f, b = self.pv_buf(n)
            for i in range(3):
                d = ar(self.A_O + i * 16, 16)
                a(f"v_mfma_f32_32x32x16_bf16 {d}, {vr(b, 4, f)}, {vr(b + 4 + 4*i, 4, f)}, {d if (g or n) else 0}")
        if not (item == 1 and g == 3):
            a("s_barrier")
        if item == 0: self.ld_tile("K", 1, g)

    def epilogue(self, item):
        a = self.a
        F = self.V_F
        T = self.V_S
        for i in range(3): a.ds(f"ds_read_b128 {vr(T + i*4, 4)}, v{self.V_STR} offset:{1536 + i*512}", f"sm{i}")
        for i in range(3):
            a.wait(lg=f"sm{i}")
            b = T + i * 4
            a(f"v_add_f32 v{b}, v{b}, v{b+1}\nv_add_f32 v{b+2}, v{b+2}, v{b+3}\nv_add_f32 v{b}, v{b}, v{b+2}")
        for i in range(3): a(f"v_rcp_f32 v{T+12+i}, v{T+i*4}")
        a.nop(4)
        for i in range(3):
            tb = T + 16 + i * 24
            for r in range(16): a(f"v_accvgpr_read_b32 v{tb+r}, a{self.A_O + i*16 + r}")
            for r in range(16): a(f"v_mul_f32 v{tb+r}, v{tb+r}, v{T+12+i}")
            for k in range(8): a(f"v_cvt_pk_bf16_f32 v{tb+16+k}, v{tb+2*k}, v{tb+2*k+1}")
            a(f"s_add_u32 s26, s33, {item*24576 + i*2048}")
            for sec in range(2):
                a.vm(f"buffer_store_dwordx4 {vr(tb + 16 + sec*4, 4)}, v{self.V_OST}, s[20:23], s26 offen offset:{sec*512}{self.opt.get('ospol','')}", f"O{item}")

    def item(self, item):
        a = self.a
        for g in range(4):
            self.qk_tile(item, g)
            if g < 3: self.ld_tile("V", item, g)
            else: a.nop(12)
            self.tile_max(g)
        self.stamp()
        self.softmax(item)
        self.stamp()
        for g in range(4): self.pv_step(item, g)
        self.stamp()
        self.epilogue(item)
        self.stamp()

    def finish(self):
        a = self.a
        if self.stamps:
            a.wait(vm="all")
            self.stamp()
            a(f"""
            s_lshl_b32 s50, s2, 2
            s_add_u32 s50, s50, s24
            s_lshl_b32 s50, s50, 7
            s_add_u32 s50, s50, {STAMP_OFF}
            v_mov_b32 v32, s50
            s_getreg_b32 s51, hwreg(HW_REG_XCC_ID)
            v_mov_b32 v33, s51
            global_store_dword v32, v33, s[48:49] offset:124
            """)
            for k in range(self.nst):
                a(f"v_mov_b32 v33, s{60+2*k}\nglobal_store_dword v32, v33, s[48:49] offset:{4*k}")
            if self.opt.get("dbgst"):
                a("""s_load_dwordx2 s[52:53], s[0:1], 88
                s_waitcnt lgkmcnt(0)
                v_mov_b32 v32, 0
                v_cmp_eq_u32 vcc, 0, v9
                s_and_saveexec_b64 s[54:55], vcc""")
                for k in range(1, self.nst):
                    a(f"s_sub_u32 s50, s{60+2*k}, s60\nv_mov_b32 v33, s50\nglobal_atomic_umax v32, v33, s[52:53] offset:{4*k}")
        a.label("L_k1_end")
        a("s_endpgm")

    def build(self):
        self.setup()
        self.qphase()
        self.item(0)
        self.item(1)
        self.finish()
        return self.a.text()

class K2:
    D = 4
    def __init__(self, stamps=False, opt=None):
        self.a = Asm(); self.stamps = stamps; self.opt = opt or {}
    def build(self):
        a = self.a; D = self.D
        a(f"""
        s_cmp_ge_u32 s2, 256
        s_cbranch_scc1 L_k2_end
        {'s_memrealtime s[60:61]' if self.stamps else ''}
        s_and_b32 s3, s2, 7
        s_lshr_b32 s34, s2, 3
        s_lshr_b32 s35, s3, 2
        s_mul_i32 s36, s35, 40
        s_add_u32 s38, s0, s36
        s_addc_u32 s39, s1, 0
        s_load_dwordx2 s[40:41], s[38:39], 32
        s_load_dwordx2 s[42:43], s[0:1], 80
        s_load_dwordx2 s[48:49], s[0:1], 96
        v_lshrrev_b32 v32, 6, v0
        v_and_b32 v33, 63, v0
        v_readfirstlane_b32 s24, v32
        s_lshr_b32 s36, s3, 1
        s_and_b32 s36, s36, 1
        s_lshl_b32 s36, s36, 3
        s_and_b32 s37, s34, 7
        s_add_u32 s36, s36, s37
        s_and_b32 s37, s3, 1
        s_lshl_b32 s37, s37, 2
        s_lshr_b32 s50, s34, 3
        s_add_u32 s37, s37, s50
        """)
        a(f"""
        s_lshr_b32 s50, s36, 1
        s_lshl_b32 s51, s35, 3
        s_add_u32 s50, s50, s51
        s_lshl_b32 s50, s50, 5
        s_lshl_b32 s51, s24, 3
        s_add_u32 s50, s50, s51
        s_mul_i32 s25, s50, 24576
        s_and_b32 s50, s36, 1
        s_mul_i32 s50, s50, 3072
        s_add_u32 s25, s25, s50
        s_lshl_b32 s27, s24, 20
        s_lshl_b32 s50, s37, 7
        s_add_u32 s27, s27, s50
        s_mul_i32 s28, s24, {D*4096}
        s_mul_i32 s30, s36, {48*2048}
        s_lshl_b32 s51, s35, 10
        s_add_u32 s30, s30, s51
        s_add_u32 s30, s30, s50
        """)
        a(f"""
        v_lshlrev_b32 v1, 4, v33
        v_lshrrev_b32 v34, 4, v33
        v_and_b32 v35, 15, v33
        v_lshrrev_b32 v36, 3, v33
        v_and_b32 v37, 7, v33
        v_lshlrev_b32 v38, 1, v34
        v_xor_b32 v37, v37, v38
        v_lshlrev_b32 v37, 4, v37
        v_lshl_add_u32 v2, v36, 10, v37
        v_add_u32 v3, 7168, v2
        v_add_u32 v4, 14336, v2
        v_add_u32 v5, 21504, v2
        """)
        a(f"""
        v_lshrrev_b32 v36, 1, v34
        v_and_b32 v37, 1, v34
        v_lshrrev_b32 v38, 2, v35
        v_lshl_add_u32 v39, v36, 4, v38
        v_lshl_add_u32 v39, v37, 2, v39
        v_lshlrev_b32 v39, 7, v39
        v_and_b32 v40, 3, v35
        v_lshl_add_u32 v39, v40, 3, v39
        v_add_u32 v39, s28, v39
        v_lshrrev_b32 v40, 3, v35
        v_lshl_add_u32 v40, v37, 1, v40
        """)
        for nt in range(4):
            a(f"v_xor_b32 v41, {nt}, v40\nv_lshl_add_u32 v{6+nt}, v41, 5, v39")
        a(f"""
        s_waitcnt lgkmcnt(0)
        s_mov_b32 s4, s48
        s_mov_b32 s5, s49
        s_mov_b32 s6, {O_BYTES}
        s_mov_b32 s7, 0x20000
        s_mov_b32 s8, s40
        s_mov_b32 s9, s41
        s_mov_b32 s10, 4194304
        s_mov_b32 s11, 0x20000
        s_mov_b32 s12, s42
        s_mov_b32 s13, s43
        s_mov_b32 s14, 1572864
        s_mov_b32 s15, 0x20000
        """)
        OB = 64
        AF = 44
        ACC = 160
        def issue(ks):
            sl = ks % D
            a(f"s_add_u32 m0, s28, {sl*4096}\ns_add_u32 s26, s27, {ks*32768}")
            for jj in range(4):
                a.vm(f"buffer_load_dwordx4 v{2+jj}, s[8:11], s26 offen offset:{jj*1024}{self.opt.get('wopol','')} lds", f"k{ks}")
            a(f"s_add_u32 s26, s25, {ks*6144}")
            for i in range(3):
                a.vm(f"buffer_load_dwordx4 {vr(OB + sl*12 + i*4, 4)}, v1, s[4:7], s26 offen offset:{i*1024}{self.opt.get('olpol','')}", f"k{ks}")
        def reads(ks):
            sl = ks % D; fb = [44, 128][ks & 1]
            for nt in range(4):
                for u in range(2):
                    a.ds(f"ds_read_b64_tr_b16 {vr(fb + nt*4 + u*2, 2)}, v{6+nt} offset:{sl*4096 + u*1024}", f"r{ks}")
        for ks in range(D - 1): issue(ks)
        a.wait(vm="k0")
        if self.stamps: a("s_memrealtime s[62:63]\ns_waitcnt lgkmcnt(0)")
        reads(0)
        for ks in range(32):
            if ks + D - 1 < 32: issue(ks + D - 1)
            if ks + 1 < 32:
                a.wait(vm=f"k{ks+1}"); reads(ks + 1)
            a.wait(lg=f"r{ks}")
            sl = ks % D; fb = [44, 128][ks & 1]
            for nt in range(4):
                for i in range(3):
                    d = vr(ACC + (nt * 3 + i) * 4, 4)
                    a(f"v_mfma_f32_16x16x32_bf16 {d}, {vr(fb + nt*4, 4)}, {vr(OB + sl*12 + i*4, 4)}, {d if ks else 0}")
        if self.stamps:
            a(f"""s_memrealtime s[64:65]
            s_waitcnt lgkmcnt(0)
            s_lshl_b32 s50, s2, 2
            s_add_u32 s50, s50, s24
            s_lshl_b32 s50, s50, 7
            s_add_u32 s50, s50, {STAMP_OFF}
            v_mov_b32 v20, s50
            v_mov_b32 v21, s60
            global_store_dword v20, v21, s[48:49] offset:80
            v_mov_b32 v21, s62
            global_store_dword v20, v21, s[48:49] offset:84
            v_mov_b32 v21, s64
            global_store_dword v20, v21, s[48:49] offset:88""")
        a(f"""
        s_mul_i32 s50, s24, 13056
        v_mul_u32_u24 v10, 272, v35
        v_lshl_add_u32 v10, v34, 4, v10
        v_add_u32 v10, s50, v10
        v_lshrrev_b32 v11, 3, v0
        v_and_b32 v12, 7, v0
        v_mul_u32_u24 v13, 272, v11
        v_lshl_add_u32 v13, v12, 5, v13
        v_lshlrev_b32 v14, 11, v11
        v_lshl_add_u32 v14, v12, 4, v14
        s_barrier
        """)
        for nt in range(4):
            for i in range(3):
                a.ds(f"ds_write_b128 v10, {vr(ACC + (nt*3+i)*4, 4)} offset:{i*16*272 + nt*64}", "pw")
        a.wait(lg="all")
        a("s_barrier")
        for rnd in range(2):
            if rnd == 1:
                a("s_cmp_ge_u32 s24, 2\ns_cbranch_scc1 L_k2_end")
            for w in range(4):
                for hf in range(2):
                    a.ds(f"ds_read_b128 {vr(64 + (w*2+hf)*4, 4)}, v13 offset:{w*13056 + rnd*32*272 + hf*16}", "rd")
            a.wait(lg="all")
            for e in range(8):
                a(f"v_add_f32 v{64+e}, v{64+e}, v{72+e}\nv_add_f32 v{80+e}, v{80+e}, v{88+e}")
            for e in range(8): a(f"v_add_f32 v{64+e}, v{64+e}, v{80+e}")
            for k in range(4): a(f"v_cvt_pk_bf16_f32 v{100+rnd*4+k}, v{64+2*k}, v{64+2*k+1}")
            a(f"s_add_u32 s26, s30, {rnd*32*2048}")
            a.vm(f"buffer_store_dwordx4 {vr(100+rnd*4, 4)}, v14, s[12:15], s26 offen", "st")
        a.label("L_k2_end")
        a("s_endpgm")
        return a.text()

def gen(fname, stamps=False, kvpol=" nt", opt=None):
    b1 = K1(stamps, kvpol, opt).build()
    b2 = K2(stamps, opt).build()
    for nm, b in (("k1", b1), ("k2", b2)):
        for p in check_hazards(b): print("HAZARD", nm, p)
    k1 = kernel_text("attn_kernel", b1, 512, 102, 256)
    k2 = kernel_text("proj_kernel", b2, 208, 80, 208)
    open(fname, "w").write(file_text([f"; @launch kernel=attn_kernel grid=(256,1,1) block=(256,1,1) lds={LDS_BYTES}",
                                      f"; @launch kernel=proj_kernel grid=(256,1,1) block=(256,1,1) lds=98304"], [k1, k2]))

if __name__ == "__main__":
    V = {
      "base": {},
      "xh": {"map": "xh"},
      "xh_nt": {"map": "xh", "xpol": " nt", "wpol": " nt", "wopol": " nt", "olpol": " nt"},
      "xh2_nt": {"xpol": " nt", "wpol": " nt", "wopol": " nt", "olpol": " nt"},
      "xh_nt_k40": {"map": "xh", "xpol": " nt", "wpol": " nt", "wopol": " nt", "olpol": "", "kskip": 40},
      "xh_nt_os": {"map": "xh", "xpol": " nt", "wpol": " nt", "wopol": " nt", "olpol": "", "ospol": " nt"},
    }
    gen("g1_dbg.s", stamps=True, opt={"dbgst": 1, "xpol": " nt", "wpol": " nt", "wopol": " nt", "olpol": " nt"})
    for n, o in V.items():
        gen(f"g1_{n}.s", opt=o)
        gen(f"g1_{n}_st.s", stamps=True, opt=o)
```

```python
import sys, math, struct
sys.path.insert(0, "gen")
from asmlib import *

def f2u(x): return struct.unpack("<I", struct.pack("<f", x))[0]
CSCALE = f2u(math.log2(math.e) / math.sqrt(128.0))

XB = 65536
PB = 131072
STM = PB + 24576
STS = STM + 1536
LDS_BYTES = 163840
O_BYTES = 2 * 8 * 32 * 24576
STAMP_OFF = 64 << 20

class K1:
    def __init__(self, stamps=False, kvpol=" nt", opt=None):
        self.a = Asm(); self.stamps = stamps; self.kvpol = kvpol; self.nst = 0
        self.opt = opt or {}
    def stamp(self):
        if not self.stamps: return
        a = self.a
        r = 60 + 2 * self.nst; self.nst += 1
        assert r + 1 <= 99
        a(f"s_memrealtime s[{r}:{r+1}]\ns_waitcnt lgkmcnt(0)"); a.lgq = []

    V_LIN = 1; V_KSRC = 2; V_VSRC = 6; V_WSRC = 7; V_XSRC = 8; V_KA = 12; V_WA = 20; V_VA = 22
    V_PW = 24; V_PR = 25; V_STW = 26; V_STR = 27; V_OST = 28; V_M = 29
    V_F = 32
    V_S = 64
    V_KL = 128
    A_Q = 0; A_O = 192; A_F = 240

    def S(self, g, i): return self.V_S + (g * 3 + i) * 16

    def setup(self):
        a = self.a
        a(f"""
        s_cmp_ge_u32 s2, 256
        s_cbranch_scc1 L_k1_end
        """)
        self.stamp()
        a(f"""
        s_and_b32 s3, s2, 7
        s_lshr_b32 s34, s2, 3
        s_lshr_b32 s35, s3, 2
        s_mul_i32 s36, s35, 40
        s_add_u32 s38, s0, s36
        s_addc_u32 s39, s1, 0
        s_load_dwordx8 s[40:47], s[38:39], 0
        s_load_dwordx2 s[48:49], s[0:1], 96
        v_lshrrev_b32 v32, 6, v0
        v_and_b32 v33, 63, v0
        v_readfirstlane_b32 s24, v32
        s_and_b32 s36, s3, 3
        s_lshl_b32 s36, s36, {1 if self.opt.get('map','xh2')=='xh2' else 3}
        s_lshr_b32 s37, s34, 3
        s_lshl_b32 s37, s37, {3 if self.opt.get('map','xh2')=='xh2' else 1}
        s_add_u32 s36, s36, s37
        s_and_b32 s37, s34, 7
        """)
        a(f"""
        s_lshl_b32 s25, s37, 5
        s_add_u32 s25, s25, s36
        s_lshl_b32 s50, s35, 8
        s_add_u32 s50, s50, s25
        s_mul_i32 s33, s50, 24576
        s_mul_i32 s50, s24, 6144
        s_add_u32 s33, s33, s50
        s_lshl_b32 s25, s25, 17
        s_lshl_b32 s50, s24, 13
        s_add_u32 s25, s25, s50
        s_lshl_b32 s28, s24, 15
        s_mov_b32 s29, {CSCALE:#x}
        s_mul_i32 s30, s37, 98304
        s_lshl_b32 s31, s36, 8
        s_lshl_b32 s50, s24, 7
        s_add_u32 s31, s31, s50
        s_lshl_b32 s32, s24, 14
        s_lshl_b32 s27, s24, 10
        s_add_u32 s27, s27, {XB}
        """)
        a(f"""
        v_lshrrev_b32 v34, 4, v33
        v_and_b32 v35, 15, v33
        v_lshrrev_b32 v36, 5, v33
        v_and_b32 v37, 31, v33
        v_lshlrev_b32 v38, 4, v33
        """)
        a(f"""
        s_lshl_b32 s50, s24, 2
        v_add_u32 v39, s50, v34
        v_xor_b32 v40, v35, v39
        v_lshlrev_b32 v40, 4, v40
        v_lshl_add_u32 v{self.V_XSRC}, v39, 10, v40
        """)
        a(f"""
        v_lshrrev_b32 v39, 3, v33
        v_and_b32 v40, 7, v33
        v_and_b32 v41, 1, v34
        v_lshlrev_b32 v41, 2, v41
        v_xor_b32 v40, v40, v41
        v_lshlrev_b32 v40, 4, v40
        v_lshl_add_u32 v{self.V_WSRC}, v39, 13, v40
        """)
        for ii in range(4):
            a(f"""
            v_add_u32 v39, {4*ii}, v34
            v_xor_b32 v39, v35, v39
            v_lshlrev_b32 v39, 4, v39
            v_lshl_add_u32 v{self.V_KSRC+ii}, v34, 8, v39
            """)
        a("s_waitcnt lgkmcnt(0)")
        a(f"""
        s_mov_b32 s4, s40
        s_mov_b32 s5, s41
        s_mov_b32 s6, 786432
        s_mov_b32 s7, 0x20000
        s_mov_b32 s8, s46
        s_mov_b32 s9, s47
        s_mov_b32 s10, 4194304
        s_mov_b32 s11, 0x20000
        s_mov_b32 s12, s42
        s_mov_b32 s13, s43
        s_mov_b32 s14, 33554432
        s_mov_b32 s15, 0x20000
        s_mov_b32 s16, s44
        s_mov_b32 s17, s45
        s_mov_b32 s18, 33554432
        s_mov_b32 s19, 0x20000
        s_mov_b32 s20, s48
        s_mov_b32 s21, s49
        s_mov_b32 s22, {O_BYTES}
        s_mov_b32 s23, 0x20000
        """)
    def setup2(self):
        a = self.a
        a(f"""
        v_lshlrev_b32 v39, 2, v34
        v_xor_b32 v39, v35, v39
        v_lshlrev_b32 v39, 4, v39
        v_lshl_add_u32 v{self.V_VSRC}, v34, 8, v39
        v_add_u32 v{self.V_LIN}, s28, v38
        """)
        for j in range(8):
            a(f"""
            v_add_u32 v39, {2*j}, v36
            v_xor_b32 v39, v35, v39
            v_lshlrev_b32 v39, 4, v39
            v_lshl_add_u32 v39, v37, 8, v39
            v_add_u32 v{self.V_KA+j}, {XB}, v39
            """)
        a(f"""
        v_lshrrev_b32 v39, 2, v35
        v_lshl_add_u32 v40, v36, 3, v39
        v_lshlrev_b32 v40, 7, v40
        v_lshrrev_b32 v41, 3, v35
        v_lshl_add_u32 v40, v41, 6, v40
        v_and_b32 v41, 1, v34
        v_lshl_add_u32 v40, v41, 5, v40
        v_and_b32 v42, 3, v35
        v_lshl_add_u32 v40, v42, 3, v40
        v_add_u32 v{self.V_WA}, s32, v40
        v_xor_b32 v{self.V_WA+1}, 64, v{self.V_WA}
        """)
        a(f"""
        v_lshl_add_u32 v40, v36, 2, v39
        v_lshlrev_b32 v40, 8, v40
        v_xor_b32 v43, s24, v39
        v_lshl_add_u32 v40, v43, 6, v40
        v_lshl_add_u32 v40, v41, 5, v40
        v_lshl_add_u32 v{self.V_VA}, v42, 3, v40
        v_add_u32 v{self.V_VA+1}, 0x10000, v{self.V_VA}
        """)
        a(f"""
        s_mul_i32 s50, s24, 6144
        s_add_u32 s50, s50, {PB}
        v_add_u32 v{self.V_PW}, s50, v38
        v_add_u32 v{self.V_PR}, {PB}, v38
        v_lshlrev_b32 v40, 4, v37
        v_add_u32 v{self.V_STR}, {STM}, v40
        s_lshl_b32 s50, s24, 2
        v_add_u32 v{self.V_STW}, s50, v{self.V_STR}
        v_lshlrev_b32 v40, 4, v35
        v_lshl_add_u32 v40, v36, 8, v40
        v_lshl_add_u32 v{self.V_OST}, v41, 10, v40
        """)
        a(f"""
        v_mov_b32 v9, v38
        v_lshlrev_b32 v40, 4, v37
        v_lshl_add_u32 v40, v36, 3, v40
        v_add_u32 v10, s32, v40
        """)

    def ld_x(self, kc, m):
        a = self.a
        a(f"s_add_u32 m0, s27, {kc*24576 + m*4096}\ns_add_u32 s26, s30, {m*16384 + kc*256}")
        a.vm(f"buffer_load_dwordx4 v{self.V_XSRC}, s[4:7], s26 offen{self.opt.get('xpol','')} lds", f"x{kc}")
    def ld_wq(self, ks):
        a = self.a
        for e in range(2):
            a(f"s_add_u32 m0, s32, {(ks%8)*2048 + e*1024}\ns_add_u32 s26, s31, {(ks*16 + e*8)*8192}")
            a.vm(f"buffer_load_dwordx4 v{self.V_WSRC}, s[8:11], s26 offen{self.opt.get('wpol','')} lds", f"wq{ks}")
    def ld_kreg(self, n):
        a = self.a
        g, i = n >> 3, n & 7
        r = self.V_KL + g * 32 + i * 4
        a(f"s_add_u32 s26, s25, {g*32768 + (i>>2)*4096}")
        a.vm(f"buffer_load_dwordx4 {vr(r,4)}, v{self.V_KSRC+(i&3)}, s[12:15], s26 offen offset:{(i&3)*1024}{self.kvpol}", f"K0_{g}")
    def ld_tile(self, kind, item, g, lo=0, hi=8):
        a = self.a
        srd = "s[12:15]" if kind == "K" else "s[16:19]"
        for i in range(lo, hi):
            if i == lo or i == 4:
                a(f"s_add_u32 m0, s28, {g*8192 + (i>>2)*4096}\ns_add_u32 s26, s25, {item*131072 + g*32768 + (i>>2)*4096}")
            vo = self.V_KSRC + (i & 3) if kind == "K" else self.V_VSRC
            a.vm(f"buffer_load_dwordx4 v{vo}, {srd}, s26 offen offset:{(i&3)*1024}{self.kvpol} lds", f"{kind}{item}_{g}")

    def q_issue(self, tau):
        kskip = self.opt.get("kskip", 2)
        if tau < 32: self.ld_wq(tau)
        c = (tau >> 3) + 1
        if c <= 3 and 1 <= (tau & 7) <= 6: self.ld_x(c, (tau & 7) - 1)
        n = tau - kskip
        if 0 <= n < 32: self.ld_kreg(n); self.kissued = n + 1

    def q_reads(self, ks):
        a = self.a
        b = 64 + (ks & 1) * 20
        for t in range(2):
            for u in range(2):
                a.ds(f"ds_read_b64_tr_b16 {vr(b + t*4 + u*2, 2)}, v{self.V_WA+t} offset:{(ks%8)*2048 + u*512}", f"qr{ks}")
        kc, jj = ks >> 3, ks & 7
        for i in range(3):
            a.ds(f"ds_read_b128 {vr(b + 8 + i*4, 4)}, v{self.V_KA+jj} offset:{(kc&1)*24576 + i*8192}", f"qr{ks}")

    def qphase(self):
        a = self.a
        self.kissued = 0
        for m in range(6): self.ld_x(0, m)
        self.q_issue(0)
        self.setup2()
        for tau in range(1, 7): self.q_issue(tau)
        a.wait(vm=["x0", "wq0"])
        a("s_barrier")
        self.stamp()
        self.q_reads(0)
        for ks in range(32):
            self.q_issue(ks + 7)
            if ks + 1 < 32:
                a.wait(vm=[f"wq{ks+1}", f"x{(ks+1)>>3}"])
                if (ks + 1) % 8 == 0: a("s_barrier")
                if ks + 1 == 16:
                    for j in range(8): a(f"v_add_u32 v{self.V_KA+j}, 49152, v{self.V_KA+j}")
                self.q_reads(ks + 1)
            a.wait(lg=f"qr{ks}")
            b = 64 + (ks & 1) * 20
            for t in range(2):
                for i in range(3):
                    acc = ar((t * 3 + i) * 16, 16)
                    a(f"v_mfma_f32_32x32x16_bf16 {acc}, {vr(b + t*4, 4)}, {vr(b + 8 + i*4, 4)}, {acc if ks else 0}")
        while self.kissued < 32:
            self.ld_kreg(self.kissued); self.kissued += 1
        a(f"s_sub_u32 s50, s28, {XB + 49152}")
        for j in range(8): a(f"v_add_u32 v{self.V_KA+j}, s50, v{self.V_KA+j}")
        a.nop(4)
        self.stamp()
        for t in range(2):
            for i in range(3):
                tb = 64 + ((t * 3 + i) & 1) * 24
                for r in range(16): a(f"v_accvgpr_read_b32 v{tb+r}, a{(t*3+i)*16 + r}")
                for k in range(8): a(f"v_cvt_pk_bf16_f32 v{tb+16+k}, v{tb+2*k}, v{tb+2*k+1}")
                for u in range(2):
                    for pc in range(2):
                        a.ds(f"ds_write_b64 v10, {vr(tb + 16 + u*4 + pc*2, 2)} offset:{((t*2+u)*3+i)*1024 + pc*512}", "qw")
        a.wait(lg="all")
        a("s_barrier")
        for hd in range(2):
            for sp in range(8):
                for i in range(3):
                    a.ds(f"ds_read_b128 {ar(hd*96 + (sp*3+i)*4, 4)}, v9 offset:{(2*hd + (sp>>2))*16384 + ((sp&3)*3+i)*1024}", "qx")
        a.wait(lg="all")
        a("s_barrier")
        self.stamp()

    def qk_tile(self, item, g):
        a = self.a
        if item == 0:
            a.wait(vm=f"K0_{g}")
            for i in range(8):
                a.ds(f"ds_write_b128 v{self.V_LIN}, {vr(self.V_KL + g*32 + i*4, 4)} offset:{g*8192 + i*1024}", "kw")
        else:
            a.wait(vm=f"K{item}_{g}")
        for j in range(8):
            a.ds(f"ds_read_b128 {vr(self.V_F + j*4, 4)}, v{self.V_KA+j} offset:{g*8192}", f"kf{j}")
        for j in range(8):
            a.wait(lg=f"kf{j}")
            for i in range(3):
                d = vr(self.S(g, i), 16)
                a(f"v_mfma_f32_32x32x16_bf16 {d}, {vr(self.V_F + j*4, 4)}, {ar(item*96 + (j*3+i)*4, 4)}, {d if j else 0}")
    def tile_max(self, g):
        a = self.a
        for k in range(8):
            for i in range(3):
                s = self.S(g, i); m = self.V_M + i
                if g == 0:
                    if k == 0: a(f"v_max3_f32 v{m}, v{s}, v{s+1}, v{s+2}")
                    elif k < 7: a(f"v_max3_f32 v{m}, v{m}, v{s+2*k+1}, v{s+2*k+2}")
                    else: a(f"v_max_f32 v{m}, v{m}, v{s+15}")
                else:
                    a(f"v_max3_f32 v{m}, v{m}, v{s+2*k}, v{s+2*k+1}")

    def softmax(self, item):
        a = self.a
        F = self.V_F
        for i in range(3): a(f"v_mov_b32 v{F+i}, v{self.V_M+i}")
        a.nop(1)
        for i in range(3): a(f"v_permlane32_swap_b32 v{self.V_M+i}, v{F+i}")
        for i in range(3): a(f"v_max_f32 v{self.V_M+i}, v{self.V_M+i}, v{F+i}")
        for i in range(3): a.ds(f"ds_write_b32 v{self.V_STW}, v{self.V_M+i} offset:{i*512}", "st")
        a.wait(lg="all")
        a("s_barrier")
        for i in range(3): a.ds(f"ds_read_b128 {vr(F + 4 + i*4, 4)}, v{self.V_STR} offset:{i*512}", f"sm{i}")
        for i in range(3):
            a.wait(lg=f"sm{i}")
            b = F + 4 + i * 4
            a(f"v_max3_f32 v{b}, v{b}, v{b+1}, v{b+2}\nv_max_f32 v{b}, v{b}, v{b+3}\nv_mul_f32 v{F+i}, s29, v{b}")
        self.stamp()
        L = F + 16
        for g in range(4):
            for i in range(3):
                s = self.S(g, i)
                for r in range(16): a(f"v_fma_f32 v{s+r}, v{s+r}, s29, -v{F+i}")
                for r in range(16): a(f"v_exp_f32 v{s+r}, v{s+r}")
                for k in range(8):
                    if g == 0 and k == 0:
                        a(f"v_add_f32 v{L+i}, v{s}, v{s+1}")
                    else:
                        a(f"v_add_f32 v{L+i}, v{L+i}, v{s+2*k}\nv_add_f32 v{L+i}, v{L+i}, v{s+2*k+1}")
                    a(f"v_cvt_pk_bf16_f32 v{s+k}, v{s+2*k}, v{s+2*k+1}")
            if g == self.opt.get("v3at", 1): self.ld_tile("V", item, 3)
        for i in range(3): a(f"v_mov_b32 v{F+i}, v{L+i}")
        a.nop(1)
        for i in range(3): a(f"v_permlane32_swap_b32 v{L+i}, v{F+i}")
        for i in range(3): a(f"v_add_f32 v{L+i}, v{L+i}, v{F+i}")
        for i in range(3): a.ds(f"ds_write_b32 v{self.V_STW}, v{L+i} offset:{1536 + i*512}", "st")

    def pv_buf(self, n):
        k = n % 3
        return [("v", self.V_F), ("v", self.V_F + 16), ("a", self.A_F)][k]
    def pv_reads(self, g, n):
        a = self.a
        wsrc, s = n >> 1, n & 1
        f, b = self.pv_buf(n)
        for u in range(2):
            a.ds(f"ds_read_b64_tr_b16 {vr(b + 2*u, 2, f)}, v{self.V_VA + (wsrc>>1)} offset:{(wsrc&1)*32768 + g*8192 + (16*s + 8*u)*256}", f"pv{n}")
        for i in range(3):
            a.ds(f"ds_read_b128 {vr(b + 4 + 4*i, 4, f)}, v{self.V_PR} offset:{wsrc*6144 + (s*3+i)*1024}", f"pv{n}")
    def pv_step(self, item, g):
        a = self.a
        for s in range(2):
            for i in range(3):
                a.ds(f"ds_write_b128 v{self.V_PW}, {vr(self.S(g, i) + 4*s, 4)} offset:{(s*3+i)*1024}", "pw")
        a.wait(vm=f"V{item}_{g}", lg="all")
        a("s_barrier")
        self.pv_reads(g, 0); self.pv_reads(g, 1)
        for n in range(8):
            if n + 2 < 8: self.pv_reads(g, n + 2)
            a.wait(lg=f"pv{n}")
            f, b = self.pv_buf(n)
            for i in range(3):
                d = ar(self.A_O + i * 16, 16)
                a(f"v_mfma_f32_32x32x16_bf16 {d}, {vr(b, 4, f)}, {vr(b + 4 + 4*i, 4, f)}, {d if (g or n) else 0}")
        if not (item == 1 and g == 3):
            a("s_barrier")
        if item == 0: self.ld_tile("K", 1, g)

    def epilogue(self, item):
        a = self.a
        F = self.V_F
        T = self.V_S
        for i in range(3): a.ds(f"ds_read_b128 {vr(T + i*4, 4)}, v{self.V_STR} offset:{1536 + i*512}", f"sm{i}")
        for i in range(3):
            a.wait(lg=f"sm{i}")
            b = T + i * 4
            a(f"v_add_f32 v{b}, v{b}, v{b+1}\nv_add_f32 v{b+2}, v{b+2}, v{b+3}\nv_add_f32 v{b}, v{b}, v{b+2}")
        for i in range(3): a(f"v_rcp_f32 v{T+12+i}, v{T+i*4}")
        a.nop(4)
        for i in range(3):
            tb = T + 16 + i * 24
            for r in range(16): a(f"v_accvgpr_read_b32 v{tb+r}, a{self.A_O + i*16 + r}")
            for r in range(16): a(f"v_mul_f32 v{tb+r}, v{tb+r}, v{T+12+i}")
            for k in range(8): a(f"v_cvt_pk_bf16_f32 v{tb+16+k}, v{tb+2*k}, v{tb+2*k+1}")
            a(f"s_add_u32 s26, s33, {item*24576 + i*2048}")
            for sec in range(2):
                a.vm(f"buffer_store_dwordx4 {vr(tb + 16 + sec*4, 4)}, v{self.V_OST}, s[20:23], s26 offen offset:{sec*512}{self.opt.get('ospol','')}", f"O{item}")

    def item(self, item):
        a = self.a
        for g in range(4):
            self.qk_tile(item, g)
            if g < 3: self.ld_tile("V", item, g)
            else: a.nop(12)
            self.tile_max(g)
        self.stamp()
        self.softmax(item)
        self.stamp()
        for g in range(4): self.pv_step(item, g)
        self.stamp()
        self.epilogue(item)
        self.stamp()

    def finish(self):
        a = self.a
        if self.stamps:
            a.wait(vm="all")
            self.stamp()
            a(f"""
            s_lshl_b32 s50, s2, 2
            s_add_u32 s50, s50, s24
            s_lshl_b32 s50, s50, 7
            s_add_u32 s50, s50, {STAMP_OFF}
            v_mov_b32 v32, s50
            s_getreg_b32 s51, hwreg(HW_REG_XCC_ID)
            v_mov_b32 v33, s51
            global_store_dword v32, v33, s[48:49] offset:124
            """)
            for k in range(self.nst):
                a(f"v_mov_b32 v33, s{60+2*k}\nglobal_store_dword v32, v33, s[48:49] offset:{4*k}")
            if self.opt.get("dbgst_old"):
                a("""s_load_dwordx2 s[52:53], s[0:1], 88
                s_waitcnt lgkmcnt(0)
                v_mov_b32 v32, 0
                v_cmp_eq_u32 vcc, 0, v9
                s_and_saveexec_b64 s[54:55], vcc""")
                for k in range(1, self.nst):
                    a(f"s_sub_u32 s50, s{60+2*k}, s60\nv_mov_b32 v33, s50\nglobal_atomic_umax v32, v33, s[52:53] offset:{4*k}")
        a.label("L_k1_end")
        a("s_endpgm")

    def build(self):
        self.setup()
        self.qphase()
        self.item(0)
        self.item(1)
        self.finish()
        return self.a.text()

class K2:
    D = 4
    def __init__(self, stamps=False, opt=None):
        self.a = Asm(); self.stamps = stamps; self.opt = opt or {}
    def build(self):
        a = self.a; D = self.D
        a(f"""
        s_cmp_ge_u32 s2, 256
        s_cbranch_scc1 L_k2_end
        {'s_memrealtime s[60:61]' if self.stamps else ''}
        s_and_b32 s3, s2, 7
        s_lshr_b32 s34, s2, 3
        s_lshr_b32 s35, s3, 2
        s_mul_i32 s36, s35, 40
        s_add_u32 s38, s0, s36
        s_addc_u32 s39, s1, 0
        s_load_dwordx2 s[40:41], s[38:39], 32
        s_load_dwordx2 s[42:43], s[0:1], 80
        s_load_dwordx2 s[48:49], s[0:1], 96
        v_lshrrev_b32 v32, 6, v0
        v_and_b32 v33, 63, v0
        v_readfirstlane_b32 s24, v32
        s_lshr_b32 s36, s3, 1
        s_and_b32 s36, s36, 1
        s_lshl_b32 s36, s36, 3
        s_and_b32 s37, s34, 7
        s_add_u32 s36, s36, s37
        s_and_b32 s37, s3, 1
        s_lshl_b32 s37, s37, 2
        s_lshr_b32 s50, s34, 3
        s_add_u32 s37, s37, s50
        """)
        a(f"""
        s_lshr_b32 s50, s36, 1
        s_lshl_b32 s51, s35, 3
        s_add_u32 s50, s50, s51
        s_lshl_b32 s50, s50, 5
        s_lshl_b32 s51, s24, 3
        s_add_u32 s50, s50, s51
        s_mul_i32 s25, s50, 24576
        s_and_b32 s50, s36, 1
        s_mul_i32 s50, s50, 3072
        s_add_u32 s25, s25, s50
        s_lshl_b32 s27, s24, 20
        s_lshl_b32 s50, s37, 7
        s_add_u32 s27, s27, s50
        s_mul_i32 s28, s24, {D*4096}
        s_mul_i32 s30, s36, {48*2048}
        s_lshl_b32 s51, s35, 10
        s_add_u32 s30, s30, s51
        s_add_u32 s30, s30, s50
        """)
        a(f"""
        v_lshlrev_b32 v1, 4, v33
        v_lshrrev_b32 v34, 4, v33
        v_and_b32 v35, 15, v33
        v_lshrrev_b32 v36, 3, v33
        v_and_b32 v37, 7, v33
        v_lshlrev_b32 v38, 1, v34
        v_xor_b32 v37, v37, v38
        v_lshlrev_b32 v37, 4, v37
        v_lshl_add_u32 v2, v36, 10, v37
        v_add_u32 v3, 7168, v2
        v_add_u32 v4, 14336, v2
        v_add_u32 v5, 21504, v2
        """)
        a(f"""
        v_lshrrev_b32 v36, 1, v34
        v_and_b32 v37, 1, v34
        v_lshrrev_b32 v38, 2, v35
        v_lshl_add_u32 v39, v36, 4, v38
        v_lshl_add_u32 v39, v37, 2, v39
        v_lshlrev_b32 v39, 7, v39
        v_and_b32 v40, 3, v35
        v_lshl_add_u32 v39, v40, 3, v39
        v_add_u32 v39, s28, v39
        v_lshrrev_b32 v40, 3, v35
        v_lshl_add_u32 v40, v37, 1, v40
        """)
        for nt in range(4):
            a(f"v_xor_b32 v41, {nt}, v40\nv_lshl_add_u32 v{6+nt}, v41, 5, v39")
        a(f"""
        s_waitcnt lgkmcnt(0)
        s_mov_b32 s4, s48
        s_mov_b32 s5, s49
        s_mov_b32 s6, {O_BYTES}
        s_mov_b32 s7, 0x20000
        s_mov_b32 s8, s40
        s_mov_b32 s9, s41
        s_mov_b32 s10, 4194304
        s_mov_b32 s11, 0x20000
        s_mov_b32 s12, s42
        s_mov_b32 s13, s43
        s_mov_b32 s14, 1572864
        s_mov_b32 s15, 0x20000
        """)
        OB = 64
        AF = 44
        ACC = 160
        def issue(ks):
            sl = ks % D
            a(f"s_add_u32 m0, s28, {sl*4096}\ns_add_u32 s26, s27, {ks*32768}")
            for jj in range(4):
                a.vm(f"buffer_load_dwordx4 v{2+jj}, s[8:11], s26 offen offset:{jj*1024}{self.opt.get('wopol','')} lds", f"k{ks}")
            a(f"s_add_u32 s26, s25, {ks*6144}")
            for i in range(3):
                a.vm(f"buffer_load_dwordx4 {vr(OB + sl*12 + i*4, 4)}, v1, s[4:7], s26 offen offset:{i*1024}{self.opt.get('olpol','')}", f"k{ks}")
        def reads(ks):
            sl = ks % D; fb = [44, 128][ks & 1]
            for nt in range(4):
                for u in range(2):
                    a.ds(f"ds_read_b64_tr_b16 {vr(fb + nt*4 + u*2, 2)}, v{6+nt} offset:{sl*4096 + u*1024}", f"r{ks}")
        for ks in range(D - 1): issue(ks)
        a.wait(vm="k0")
        if self.stamps: a("s_memrealtime s[62:63]\ns_waitcnt lgkmcnt(0)")
        reads(0)
        for ks in range(32):
            if ks + D - 1 < 32: issue(ks + D - 1)
            if ks + 1 < 32:
                a.wait(vm=f"k{ks+1}"); reads(ks + 1)
            a.wait(lg=f"r{ks}")
            sl = ks % D; fb = [44, 128][ks & 1]
            for nt in range(4):
                for i in range(3):
                    d = vr(ACC + (nt * 3 + i) * 4, 4)
                    a(f"v_mfma_f32_16x16x32_bf16 {d}, {vr(fb + nt*4, 4)}, {vr(OB + sl*12 + i*4, 4)}, {d if ks else 0}")
        if self.stamps:
            a(f"""s_memrealtime s[64:65]
            s_waitcnt lgkmcnt(0)
            s_lshl_b32 s50, s2, 2
            s_add_u32 s50, s50, s24
            s_lshl_b32 s50, s50, 7
            s_add_u32 s50, s50, {STAMP_OFF}
            v_mov_b32 v20, s50
            v_mov_b32 v21, s60
            global_store_dword v20, v21, s[48:49] offset:80
            v_mov_b32 v21, s62
            global_store_dword v20, v21, s[48:49] offset:84
            v_mov_b32 v21, s64
            global_store_dword v20, v21, s[48:49] offset:88""")
        if self.opt.get("dbgst"):
            a(f"""s_load_dwordx2 s[52:53], s[0:1], 88
            s_waitcnt lgkmcnt(0)
            s_cmp_lg_u32 s2, 0
            s_cbranch_scc1 L_k2_nodbg
            s_cmp_lg_u32 s24, 0
            s_cbranch_scc1 L_k2_nodbg
            v_lshlrev_b32 v20, 2, v33
            v_add_u32 v21, {STAMP_OFF + 100*512}, v20
            global_load_dword v22, v21, s[48:49]
            s_waitcnt vmcnt(0)
            v_readfirstlane_b32 s54, v22
            s_nop 4
            v_subrev_u32 v22, s54, v22
            s_sub_u32 s55, s64, s54
            v_writelane_b32 v22, s55, 15
            s_sub_u32 s55, s60, s54
            v_writelane_b32 v22, s55, 0
            global_store_dword v20, v22, s[52:53]
            s_waitcnt vmcnt(0)""")
            a.label("L_k2_nodbg")
        a(f"""
        s_mul_i32 s50, s24, 13056
        v_mul_u32_u24 v10, 272, v35
        v_lshl_add_u32 v10, v34, 4, v10
        v_add_u32 v10, s50, v10
        v_lshrrev_b32 v11, 3, v0
        v_and_b32 v12, 7, v0
        v_mul_u32_u24 v13, 272, v11
        v_lshl_add_u32 v13, v12, 5, v13
        v_lshlrev_b32 v14, 11, v11
        v_lshl_add_u32 v14, v12, 4, v14
        s_barrier
        """)
        for nt in range(4):
            for i in range(3):
                a.ds(f"ds_write_b128 v10, {vr(ACC + (nt*3+i)*4, 4)} offset:{i*16*272 + nt*64}", "pw")
        a.wait(lg="all")
        a("s_barrier")
        for rnd in range(2):
            if rnd == 1:
                a("s_cmp_ge_u32 s24, 2\ns_cbranch_scc1 L_k2_end")
            for w in range(4):
                for hf in range(2):
                    a.ds(f"ds_read_b128 {vr(64 + (w*2+hf)*4, 4)}, v13 offset:{w*13056 + rnd*32*272 + hf*16}", "rd")
            a.wait(lg="all")
            for e in range(8):
                a(f"v_add_f32 v{64+e}, v{64+e}, v{72+e}\nv_add_f32 v{80+e}, v{80+e}, v{88+e}")
            for e in range(8): a(f"v_add_f32 v{64+e}, v{64+e}, v{80+e}")
            for k in range(4): a(f"v_cvt_pk_bf16_f32 v{100+rnd*4+k}, v{64+2*k}, v{64+2*k+1}")
            a(f"s_add_u32 s26, s30, {rnd*32*2048}")
            a.vm(f"buffer_store_dwordx4 {vr(100+rnd*4, 4)}, v14, s[12:15], s26 offen", "st")
        a.label("L_k2_end")
        a("s_endpgm")
        return a.text()

def gen(fname, stamps=False, kvpol=" nt", opt=None):
    b1 = K1(stamps, kvpol, opt).build()
    b2 = K2(stamps, opt).build()
    for nm, b in (("k1", b1), ("k2", b2)):
        for p in check_hazards(b): print("HAZARD", nm, p)
    k1 = kernel_text("attn_kernel", b1, 512, 102, 256)
    k2 = kernel_text("proj_kernel", b2, 208, 80, 208)
    open(fname, "w").write(file_text([f"; @launch kernel=attn_kernel grid=(256,1,1) block=(256,1,1) lds={LDS_BYTES}",
                                      f"; @launch kernel=proj_kernel grid=(256,1,1) block=(256,1,1) lds=98304"], [k1, k2]))

if __name__ == "__main__":
    V = {
      "base": {},
      "xh": {"map": "xh"},
      "xh_nt": {"map": "xh", "xpol": " nt", "wpol": " nt", "wopol": " nt", "olpol": " nt"},
      "xh2_nt": {"xpol": " nt", "wpol": " nt", "wopol": " nt", "olpol": " nt"},
      "xh_nt_k40": {"map": "xh", "xpol": " nt", "wpol": " nt", "wopol": " nt", "olpol": "", "kskip": 40},
      "xh_nt_os": {"map": "xh", "xpol": " nt", "wpol": " nt", "wopol": " nt", "olpol": "", "ospol": " nt"},
    }
    gen("g1_dbg.s", stamps=True, opt={"dbgst": 1, "xpol": " nt", "wpol": " nt", "wopol": " nt", "olpol": " nt"})
    for n, o in V.items():
        gen(f"g1_{n}.s", opt=o)
        gen(f"g1_{n}_st.s", stamps=True, opt=o)
```

```python
import re
NAME = "concat_heads__gqa_block_cached__mha_block_cached__near_ridge"
HEADER = open("cdna_kernels/" + NAME + ".s.ref").read().split("; Override launch")[0]

def vr(base, n=1, f="v"):
    return f"{f}{base}" if n == 1 else f"{f}[{base}:{base+n-1}]"
def ar(base, n=1):
    return vr(base, n, "a")

class Asm:
    def __init__(self):
        self.lines = []
        self.uid = 0
        self.cache = {}
        self.vmq = []
        self.lgq = []
    def __call__(self, s):
        for l in s.strip("\n").split("\n"):
            l = l.strip()
            if l: self.lines.append("    " + l)
    def c(self, s):
        self.lines.append("    ; " + s)
    def label(self, name):
        self.lines.append(name + ":")
        self.cache = {}
    def sset(self, reg, base, imm):
        imm = int(imm)
        if self.cache.get(reg) == (base, imm): return
        self.cache[reg] = (base, imm)
        self(f"s_add_u32 {reg}, {base}, {imm}" if base else f"s_mov_b32 {reg}, {imm}")
    def newlabel(self, p="L"):
        self.uid += 1
        return f"{p}_{self.uid}"
    def text(self):
        return "\n".join(self.lines) + "\n"
    def vm(self, s, tag):
        self(s); self.vmq.append(tag)
    def ds(self, s, tag):
        self(s); self.lgq.append(tag)
    def _need(self, q, tags):
        if not isinstance(tags, (list, tuple, set)): tags = [tags]
        idx = [i for i, t in enumerate(q) if t in tags]
        if not idx: return None
        return len(q) - 1 - max(idx)
    def wait(self, vm=None, lg=None):
        parts = []
        if vm is not None:
            n = 0 if vm == "all" else self._need(self.vmq, vm)
            if n is not None and (vm != "all" or self.vmq):
                assert n <= 63, n
                parts.append(f"vmcnt({n})")
                self.vmq = self.vmq[len(self.vmq) - n:] if n else []
        if lg is not None:
            n = 0 if lg == "all" else self._need(self.lgq, lg)
            if n is not None and (lg != "all" or self.lgq):
                n = min(n, 15)
                parts.append(f"lgkmcnt({n})")
                self.lgq = self.lgq[len(self.lgq) - n:] if n else []
        if parts: self("s_waitcnt " + " ".join(parts))
    def nop(self, n):
        while n > 0:
            k = min(n, 16)
            self(f"s_nop {k-1}"); n -= k

_REG = re.compile(r"^(v|a|s)(\d+)$|^(v|a|s)\[(\d+):(\d+)\]$")
def regs_of(tok):
    tok = tok.strip()
    tok = re.sub(r"^-|^abs\(|\)$|^\|", "", tok).rstrip("|")
    m = _REG.match(tok)
    if not m:
        if tok in ("vcc", "m0", "exec"): return {tok}
        return set()
    if m.group(1): return {m.group(1) + m.group(2)}
    return {m.group(3) + str(i) for i in range(int(m.group(4)), int(m.group(5)) + 1)}

TRANS = ("v_exp_f32", "v_log_f32", "v_rcp_f32", "v_rsq_f32", "v_sqrt_f32")
def parse(line):
    l = line.split(";")[0].strip()
    if not l or l.endswith(":") or l.startswith("."): return None
    p = l.split(None, 1)
    mn = p[0]
    ops = []
    if len(p) > 1:
        rest = p[1]
        ops = [o.strip() for o in re.split(r",(?![^\[]*\])", rest)]
        if ops:
            last = ops[-1].split()
            ops[-1] = last[0] if last else ""
            mods = last[1:]
        else: mods = []
    else: mods = []
    d = dict(mn=mn, ops=ops, mods=mods, dst=set(), src=set(), cls="other", srcC=set(), line=l)
    R = regs_of
    if mn.startswith("v_mfma"):
        d["cls"] = "mfma"; d["dst"] = R(ops[0]); d["srcAB"] = R(ops[1]) | R(ops[2]); d["srcC"] = R(ops[3]); d["src"] = d["srcAB"] | d["srcC"]
        d["passes"] = 8 if "32x32x16" in mn else 4
    elif mn.startswith("v_permlane"):
        d["cls"] = "valu"; d["perm"] = True; d["dst"] = R(ops[0]) | R(ops[1]); d["src"] = R(ops[0]) | R(ops[1])
    elif mn.startswith("v_cmp"):
        d["cls"] = "valu"; d["dst"] = R(ops[0]); d["src"] = set().union(*[R(o) for o in ops[1:]])
    elif mn.startswith("v_readfirstlane") or mn.startswith("v_readlane"):
        d["cls"] = "valu"; d["rfl"] = True; d["dst"] = R(ops[0]); d["src"] = set().union(*[R(o) for o in ops[1:]])
    elif mn.startswith("v_"):
        d["cls"] = "valu"; d["dst"] = R(ops[0]); d["src"] = set().union(*[R(o) for o in ops[1:]]) if len(ops) > 1 else set()
        if mn.startswith("v_fmac") or mn.startswith("v_pk_fmac"): d["src"] |= d["dst"]
        if mn.split("_e")[0] in TRANS or mn in TRANS: d["trans"] = True
        if "dpp" in " ".join(mods) or any(m.startswith("row_") or m.startswith("quad_perm") for m in mods): d["dpp"] = True
    elif mn.startswith("ds_read") :
        d["cls"] = "ds"; d["dst"] = R(ops[0]); d["src"] = R(ops[1])
    elif mn.startswith("ds_write"):
        d["cls"] = "ds"; d["src"] = set().union(*[R(o) for o in ops])
    elif mn.startswith("buffer_load"):
        d["cls"] = "vmem"
        if "lds" in mods:
            d["src"] = set().union(*[R(o) for o in ops]) | {"m0"}; d["dma"] = True
        else:
            d["dst"] = R(ops[0]); d["src"] = set().union(*[R(o) for o in ops[1:]])
    elif mn.startswith("buffer_store") or mn.startswith("global_store"):
        d["cls"] = "vmem"; d["src"] = set().union(*[R(o) for o in ops])
        if "x4" in mn or "x3" in mn:
            d["wide"] = R(ops[0]) if mn.startswith("buffer") else R(ops[1])
    elif mn.startswith("global_load"):
        d["cls"] = "vmem"; d["dst"] = R(ops[0]); d["src"] = set().union(*[R(o) for o in ops[1:]])
    elif mn.startswith("global_atomic") or mn.startswith("buffer_atomic"):
        d["cls"] = "vmem"; d["src"] = set().union(*[R(o) for o in ops])
        if "sc0" in mods: d["dst"] = R(ops[0])
    elif mn.startswith("s_"):
        d["cls"] = "salu"
        if mn in ("s_nop", "s_waitcnt", "s_barrier", "s_endpgm", "s_setprio", "s_sleep") or mn.startswith("s_cbranch") or mn == "s_branch" or mn.startswith("s_cmp"):
            d["src"] = set().union(*[R(o) for o in ops]) if ops else set()
        else:
            d["dst"] = R(ops[0]); d["src"] = set().union(*[R(o) for o in ops[1:]]) if len(ops) > 1 else set()
    return d

def check_hazards(text, want_pos=False):
    ins = []
    for ln, l in enumerate(text.split("\n")):
        x = parse(l)
        if x: x["ln"] = ln; ins.append(x)
    probs = []
    def states(i):
        return int(ins[i]["ops"][0], 0) + 1 if ins[i]["mn"] == "s_nop" else 1
    for j, c in enumerate(ins):
        dist = 0
        for i in range(j - 1, max(-1, j - 40), -1):
            p = ins[i]
            need = 0; why = ""
            vs = lambda S: {r for r in S if r[0] in "va" and r not in ("vcc",)}
            if p["cls"] == "valu":
                pd = p["dst"]
                if c["cls"] == "mfma" and vs(pd) & c["src"]: need, why = 2, "valu->mfma src"
                if c.get("perm") and vs(pd) & c["src"]: need, why = max(need, 2), "valu->permlane"
                if c.get("dpp") and vs(pd) & c["src"]: need, why = max(need, 2), "valu->dpp"
                if c.get("rfl") and vs(pd) & c["src"]: need, why = max(need, 1), "valu->readlane"
                if p.get("trans") and c["cls"] == "valu" and not c.get("trans") and vs(pd) & c["src"]: need, why = max(need, 1), "trans->valu"
                sp = {r for r in pd if r[0] == "s" or r == "vcc"}
                if sp and c["cls"] == "vmem" and sp & c["src"]: need, why = max(need, 5), "valu sgpr->vmem"
                if sp and c["cls"] == "valu" and sp & c["src"]: need, why = max(need, 2), "valu sgpr->valu"
            if p["cls"] == "mfma":
                n = {4: (8, 6, 3), 8: (12, 10, 7)}[p["passes"]]
                if c["cls"] == "mfma":
                    if p["dst"] & c["srcAB"]: need, why = n[0], "mfma D->mfma AB"
                    elif p["dst"] & c["srcC"] and not (p["dst"] == c["srcC"] and p["passes"] == c["passes"]): need, why = n[1], "mfma D->mfma C overlap"
                    elif p["dst"] & c["dst"] and not (p["dst"] == c["srcC"]): need, why = n[1], "mfma D WAW"
                elif c["cls"] in ("valu", "ds", "vmem"):
                    if p["dst"] & (c["src"] | c["dst"]): need, why = n[0], "mfma D->valu/mem"
                    elif c["cls"] == "valu" and p["srcC"] & c["dst"]: need, why = n[2], "mfma C WAR"
            if p["cls"] == "salu" and "m0" in p["dst"] and c.get("dma"): need, why = 1, "m0->dma"
            if p.get("wide") and c["cls"] in ("valu",) and p["wide"] & c["dst"]: need, why = 2, "wide store WAR"
            if p.get("wide") and c["cls"] in ("ds", "vmem", "mfma") and p["wide"] & c["dst"]: need, why = 1, "wide store WAR"
            if need > dist:
                msg = f"{why}: need {need} have {dist}: [{p['line']}] -> [{c['line']}]"
                probs.append((c["ln"], need - dist, msg) if want_pos else msg)
            dist += states(i)
            if dist >= 20: break
    return probs

def fix_hazards(text, verbose=False):
    for _ in range(200):
        probs = check_hazards(text, want_pos=True)
        if not probs: return text
        lines = text.split("\n")
        seen = set()
        for (ln, short, msg) in sorted(probs, key=lambda x: (-x[0], -x[1])):
            if ln in seen: continue
            seen.add(ln)
            if verbose: print("  nop", short, msg)
            lines.insert(ln, f"    s_nop {short-1}")
        text = "\n".join(lines)
    raise RuntimeError("hazard fix did not converge")

def kernel_text(name, body, vgpr, sgpr, accum):
    return f""".text
.globl {name}
.p2align 8
.type {name},@function
{name}:
{body}
.section .rodata,"a"
.p2align 6
.amdhsa_kernel {name}
  .amdhsa_next_free_vgpr {vgpr}
  .amdhsa_next_free_sgpr {sgpr}
  .amdhsa_accum_offset {accum}
  .amdhsa_group_segment_fixed_size 0
  .amdhsa_kernarg_size 104
  .amdhsa_user_sgpr_count 2
  .amdhsa_user_sgpr_kernarg_segment_ptr 1
  .amdhsa_system_sgpr_workgroup_id_x 1
.end_amdhsa_kernel
"""

def file_text(launch_lines, kernels):
    s = HEADER
    for l in launch_lines:
        s += l + "\n"
    s += '.amdgcn_target "amdgcn-amd-amdhsa--gfx950"\n'
    for k in kernels:
        s += k
    return s
```

```python
import sys, re
sys.path.insert(0, "gen")
from asmlib import parse

def load(text):
    ins = []; labels = {}
    for l in text.split("\n"):
        t = l.split(";")[0].strip()
        if t.endswith(":") and not t.startswith("."):
            labels[t[:-1]] = len(ins); continue
        x = parse(l)
        if x and (x["mn"][:2] in ("s_", "v_") or x["mn"].startswith(("ds_", "buffer_", "global_"))): ins.append(x)
    preds = [[] for _ in range(len(ins) + 1)]
    for i, x in enumerate(ins):
        mn = x["mn"]
        if mn not in ("s_branch", "s_endpgm"): preds[i + 1].append(i)
        if mn == "s_branch" or mn.startswith("s_cbranch"): preds[labels[x["ops"][0]]].append(i)
    return ins, preds

def need(p, c):
    vs = lambda S: {r for r in S if r[0] in "va" and r != "vcc"}
    n = 0; why = ""
    def up(k, w):
        nonlocal n, why
        if k > n: n, why = k, w
    if p["cls"] == "valu":
        pd = p["dst"]
        if c["cls"] == "mfma" and vs(pd) & c["src"]: up(2, "valu->mfma")
        if c.get("perm") and vs(pd) & c["src"]: up(2, "valu->permlane")
        if c.get("rfl") and vs(pd) & c["src"]: up(1, "valu->readlane")
        if p.get("trans") and c["cls"] == "valu" and not c.get("trans") and vs(pd) & c["src"]: up(1, "trans->valu")
        sp = {r for r in pd if r[0] == "s" or r == "vcc"}
        if sp and c["cls"] == "vmem" and sp & c["src"]: up(5, "valu sgpr->vmem")
        if sp and c["cls"] == "valu" and sp & c["src"]: up(2, "valu sgpr->valu")
    if p["cls"] == "mfma":
        t = {4: (8, 6, 3), 8: (12, 10, 7)}[p["passes"]]
        if c["cls"] == "mfma":
            if p["dst"] & c["srcAB"]: up(t[0], "mfma D->AB")
            elif p["dst"] & c["srcC"] and p["dst"] != c["srcC"]: up(t[1], "mfma D->C overlap")
            elif p["dst"] & c["dst"] and p["dst"] != c["srcC"]: up(t[1], "mfma WAW")
        elif c["cls"] in ("valu", "ds", "vmem"):
            if p["dst"] & (c["src"] | c["dst"]): up(t[0], "mfma D->valu/mem")
            elif c["cls"] == "valu" and p["srcC"] & c["dst"]: up(t[2], "mfma C WAR")
    if p["cls"] == "salu" and "m0" in p["dst"] and c.get("dma"): up(1, "m0->dma")
    if p.get("wide") and c["cls"] == "valu" and p["wide"] & c["dst"]: up(2, "wide store WAR")
    if p.get("wide") and c["cls"] in ("ds", "vmem", "mfma") and p["wide"] & c["dst"]: up(1, "wide store WAR")
    return n, why

def check(text):
    ins, preds = load(text)
    st = lambda i: int(ins[i]["ops"][0], 0) + 1 if ins[i]["mn"] == "s_nop" else 1
    probs = set()
    for j, c in enumerate(ins):
        stack = [(p, 0) for p in preds[j]]; seen = {}
        while stack:
            i, d = stack.pop()
            if seen.get(i, 99) <= d: continue
            seen[i] = d
            n, why = need(ins[i], c)
            if n > d: probs.add(f"{why}: need {n} have {d}: [{ins[i]['line']}] -> [{c['line']}]")
            d2 = d + st(i)
            if d2 < 13: stack += [(p, d2) for p in preds[i]]
    return sorted(probs)

if __name__ == "__main__":
    for f in sys.argv[1:]:
        t = open(f).read()
        t = t[t.index("_kernel:\n") + 9:t.index(".section .rodata")]
        p = check(t)
        print(f, "problems:", len(p))
        for x in p[:20]: print("  ", x)
```

```python
import sys, math, struct
sys.path.insert(0, "gen")
from asmlib import *

def f2u(x): return struct.unpack("<I", struct.pack("<f", x))[0]
CSCALE = f2u(math.log2(math.e) / math.sqrt(128.0))

XB = 65536
PB = 131072
STM = PB + 24576
LDS_BYTES = 163840
O_BYTES = 2 * 8 * 16 * 57344
FLAG_OFF = 16 << 20
PART_OFF = 32 << 20
PART_BYTES = 2 * 8 * 4 * 4 * 4 * 4 * 2 * 1024
JUNK = STM + 3072
STAMP_OFF = 64 << 20
SPIN_MAX = 1 << 16
MF32 = "v_mfma_f32_32x32x16_bf16"
MF16 = "v_mfma_f32_16x16x32_bf16"

def interleave(mains, fills, first=0):
    tot = sum(w for w, _ in fills)
    n = len(mains)
    fi = 0; done = 0.0
    def upto(target):
        nonlocal fi, done
        while fi < len(fills) and done + fills[fi][0] * 0.5 <= target:
            fills[fi][1](); done += fills[fi][0]; fi += 1
    first = min(first, tot)
    upto(first)
    for k, m in enumerate(mains):
        m()
        upto(first + (tot - first) * (k + 1) / n)
    while fi < len(fills):
        fills[fi][1](); fi += 1

def merge(*lists):
    lists = [l for l in lists if l]
    tots = [sum(w for w, _ in l) for l in lists]
    pos = [0] * len(lists); cum = [0.0] * len(lists)
    out = []
    while any(pos[i] < len(lists[i]) for i in range(len(lists))):
        best = min((i for i in range(len(lists)) if pos[i] < len(lists[i])),
                   key=lambda i: (cum[i] + lists[i][pos[i]][0] * 0.5) / tots[i])
        out.append(lists[best][pos[best]]); cum[best] += lists[best][pos[best]][0]; pos[best] += 1
    return out

class Sched:
    def __init__(self): self.mains = []; self.ops = []
    def main(self, fn): self.mains.append(fn); return len(self.mains) - 1
    def at(self, pos, fn): self.ops.append((pos, len(self.ops), fn))
    def spread(self, fills, lo, hi):
        tot = sum(w for w, _ in fills); c = 0.0
        for w, fn in fills:
            self.at(lo + (hi - lo) * (c + w * 0.5) / tot, fn); c += w
    def emit(self):
        ops = sorted(self.ops, key=lambda o: (o[0], o[1])); k = 0
        while k < len(ops) and ops[k][0] < 0: ops[k][2](); k += 1
        for i, m in enumerate(self.mains):
            m()
            while k < len(ops) and ops[k][0] < i + 1: ops[k][2](); k += 1
        while k < len(ops): ops[k][2](); k += 1

class KF:
    V_LIN = 1; V_KSRC = 2; V_VSRC = 6; V_L16 = 7; V_WSRC = 8; V_XSRC = 9; V_QW = 10; V_ONES = 8
    V_KA = 12; V_WA = 20; V_VA = 22; V_PW = 24; V_PR = 25; V_STW = 26; V_STR = 27; V_OST = 28; V_FL = 29; V_FR = 30
    V_F = 32; SB = [64, 112]; V_P = 160; QACC = 96
    A_O = 192; A_F = 240
    V_WO = 2; V_OUT = 12; V_TR = 13; V_PO = 17

    def __init__(self, stamps=False, kvpol=" nt", opt=None):
        self.a = Asm(); self.stamps = stamps; self.kvpol = kvpol; self.nst = 0
        self.opt = opt or {}
        self.final = False
        self.k_exact = set()
        self.nreg = self.opt.get('nreg', 4)
        self.in3 = False
        self.fl0_done = False
        self.fl0_checked = False
        self.o_issued = 0
        self.e_rest = []
    def tstamp(self):
        if self.opt.get("trace"): self.stamp(True)
    def stamp(self, t=False):
        if not self.stamps: return
        if self.opt.get("trace") and not t and self.nst > 0 and not self.final: return
        if self.opt.get("only3") and self.nst > 0 and not self.in3: return
        if self.opt.get("lite") and self.nst > 0 and not self.final: return
        a = self.a
        r = 64 + 2 * self.nst; self.nst += 1
        assert r + 1 <= 93
        if self.nst - 1 in self.opt.get("clk", ()):
            q = 98 + 2 * list(self.opt["clk"]).index(self.nst - 1)
            a(f"s_memtime s[{q}:{q+1}]")
        a(f"{'s_memtime' if self.opt.get('cyc') else 's_memrealtime'} s[{r}:{r+1}]\ns_waitcnt lgkmcnt(0)"); a.lgq = []
    def S(self, g, i): return self.SB[g & 1] + i * 16
    def P(self, g, i, s): return self.V_P + g * 24 + (i * 2 + s) * 4
    def slot(self, idx): return 0 if idx < self.nreg else (idx - self.nreg + 1) % 4
    def kland(self, g, i):
        return vr(192 + g * 32 + i * 4, 4) if g < 2 else ar(192 + (g - 2) * 32 + i * 4, 4)

    def lane_parts(self, t):
        self.a(f"""
        v_mbcnt_lo_u32_b32 v{t}, -1, 0
        v_mbcnt_hi_u32_b32 v{t}, -1, v{t}
        v_lshrrev_b32 v{t+1}, 4, v{t}
        v_and_b32 v{t+2}, 15, v{t}
        v_lshrrev_b32 v{t+3}, 5, v{t}
        v_and_b32 v{t+4}, 31, v{t}
        """)
    def ksrc_addrs(self, t):
        for ii in range(4):
            self.a(f"""
            v_add_u32 v{t+6}, {4*ii}, v{t+1}
            v_xor_b32 v{t+6}, v{t+2}, v{t+6}
            v_lshlrev_b32 v{t+6}, 4, v{t+6}
            v_lshl_add_u32 v{self.V_KSRC+ii}, v{t+1}, 8, v{t+6}
            """)
    def ka_addrs(self, t, base):
        for j in range(8):
            self.a(f"""
            v_add_u32 v{t+6}, {2*j}, v{t+3}
            v_xor_b32 v{t+6}, v{t+2}, v{t+6}
            v_lshlrev_b32 v{t+6}, 4, v{t+6}
            v_lshl_add_u32 v{t+6}, v{t+4}, 8, v{t+6}
            v_add_u32 v{self.V_KA+j}, {base}, v{t+6}
            """)
    def setup(self):
        a = self.a
        a("s_cmp_ge_u32 s2, 256\ns_cbranch_scc1 L_end")
        self.stamp()
        xh2 = self.opt.get('map', 'xh2') == 'xh2'
        a(f"""
        s_and_b32 s3, s2, 7
        s_lshr_b32 s34, s2, 3
        s_lshr_b32 s35, s3, 2
        s_mul_i32 s36, s35, 40
        s_add_u32 s38, s0, s36
        s_addc_u32 s39, s1, 0
        s_load_dwordx8 s[40:47], s[38:39], 0
        s_load_dwordx2 s[48:49], s[0:1], 96
        v_lshrrev_b32 v32, 6, v0
        s_and_b32 s36, s3, 3
        v_readfirstlane_b32 s24, v32
        s_lshl_b32 s36, s36, {1 if xh2 else 3}
        s_lshr_b32 s37, s34, 3
        s_lshl_b32 s37, s37, {3 if xh2 else 1}
        s_add_u32 s36, s36, s37
        s_and_b32 s37, s34, 7
        """)
        a(f"""
        s_lshl_b32 s25, s37, 5
        s_add_u32 s25, s25, s36
        s_lshl_b32 s50, s35, 8
        s_add_u32 s50, s50, s25
        s_mul_i32 s33, s50, 28672
        s_mul_i32 s50, s24, 6144
        s_add_u32 s33, s33, s50
        s_lshl_b32 s25, s25, 17
        s_lshl_b32 s50, s24, 13
        s_add_u32 s25, s25, s50
        s_lshl_b32 s28, s24, 15
        s_mul_i32 s30, s37, 98304
        s_lshl_b32 s31, s36, 8
        s_lshl_b32 s50, s24, 7
        s_add_u32 s31, s31, s50
        s_lshl_b32 s32, s24, 14
        s_lshl_b32 s27, s24, 10
        s_add_u32 s27, s27, {XB}
        s_lshr_b32 s50, s34, 3
        s_add_u32 s50, s50, s37
        """)
        for kc in range(4):
            if self.opt.get("rot", 1): a(f"s_add_u32 s51, s50, {kc}\ns_and_b32 s51, s51, 3")
            else: a(f"s_mov_b32 s51, {kc}")
            a(f"""s_lshl_b32 s{52+kc}, s51, 8
            s_add_u32 s{52+kc}, s{52+kc}, s30
            s_lshl_b32 s{56+kc}, s51, 20
            s_add_u32 s{56+kc}, s{56+kc}, s31""")
        a(self.opt.get("trot", "s_mov_b32 s50, 0"))
        for g in range(4):
            a(f"s_add_u32 s51, s50, {g}\ns_and_b32 s51, s51, 3\ns_lshl_b32 s51, s51, 15\ns_add_u32 s{94+g}, s25, s51")
        self.lane_parts(33)
        a(f"""
        v_lshlrev_b32 v{self.V_L16}, 4, v33
        s_lshl_b32 s50, s24, 2
        v_add_u32 v39, s50, v34
        v_xor_b32 v40, v35, v39
        v_lshlrev_b32 v40, 4, v40
        v_lshl_add_u32 v{self.V_XSRC}, v39, 10, v40
        v_lshrrev_b32 v39, 3, v33
        v_and_b32 v40, 7, v33
        v_and_b32 v41, 1, v34
        v_lshlrev_b32 v41, 2, v41
        v_xor_b32 v40, v40, v41
        v_lshlrev_b32 v40, 4, v40
        v_lshl_add_u32 v{self.V_WSRC}, v39, 13, v40
        """)
        self.ksrc_addrs(33)
        a("v_lshlrev_b32 v28, 7, v33")
        a("s_waitcnt lgkmcnt(0)")
        a(f"""
        s_mov_b32 s4, s40
        s_mov_b32 s5, s41
        s_mov_b32 s6, 786432
        s_mov_b32 s7, 0x20000
        s_mov_b32 s8, s46
        s_mov_b32 s9, s47
        s_mov_b32 s10, 4194304
        s_mov_b32 s11, 0x20000
        s_mov_b32 s12, s42
        s_mov_b32 s13, s43
        s_mov_b32 s14, 33554432
        s_mov_b32 s15, 0x20000
        s_mov_b32 s16, s44
        s_mov_b32 s17, s45
        s_mov_b32 s18, 33554432
        s_mov_b32 s19, 0x20000
        s_mov_b32 s20, s48
        s_mov_b32 s21, s49
        s_mov_b32 s22, {O_BYTES}
        s_mov_b32 s23, 0x20000
        s_load_dwordx2 s[40:41], s[38:39], 32
        s_load_dwordx4 s[44:47], s[0:1], 80
        """)
    def setup2(self):
        a = self.a
        a(f"""
        v_lshlrev_b32 v39, 2, v34
        v_xor_b32 v39, v35, v39
        v_lshlrev_b32 v39, 4, v39
        v_lshl_add_u32 v{self.V_VSRC}, v34, 8, v39
        v_add_u32 v{self.V_LIN}, s28, v{self.V_L16}
        """)
        self.ka_addrs(33, XB)
        a(f"""
        v_lshrrev_b32 v39, 2, v35
        v_lshl_add_u32 v40, v36, 3, v39
        v_lshlrev_b32 v40, 7, v40
        v_lshrrev_b32 v41, 3, v35
        v_lshl_add_u32 v40, v41, 6, v40
        v_and_b32 v41, 1, v34
        v_lshl_add_u32 v40, v41, 5, v40
        v_and_b32 v42, 3, v35
        v_lshl_add_u32 v40, v42, 3, v40
        v_add_u32 v{self.V_WA}, s32, v40
        v_xor_b32 v{self.V_WA+1}, 64, v{self.V_WA}
        v_lshl_add_u32 v40, v36, 2, v39
        v_lshlrev_b32 v40, 8, v40
        v_xor_b32 v43, s24, v39
        v_lshl_add_u32 v40, v43, 6, v40
        v_lshl_add_u32 v40, v41, 5, v40
        v_lshl_add_u32 v{self.V_VA}, v42, 3, v40
        v_add_u32 v{self.V_VA+1}, 0x10000, v{self.V_VA}
        s_mul_i32 s50, s24, 3072
        s_add_u32 s50, s50, {PB}
        v_add_u32 v{self.V_PW}, s50, v{self.V_L16}
        v_add_u32 v{self.V_PR}, {PB}, v{self.V_L16}
        v_lshlrev_b32 v40, 4, v37
        v_add_u32 v{self.V_STR}, {STM}, v40
        s_lshl_b32 s50, s24, 2
        v_add_u32 v{self.V_STW}, s50, v{self.V_STR}
        v_lshlrev_b32 v40, 4, v37
        v_lshl_add_u32 v40, v36, 3, v40
        s_mul_i32 s50, s24, 12288
        s_add_u32 s50, s50, {PB - 24576}
        s_add_u32 s51, s50, 8192
        s_add_u32 s26, s28, 65536
        s_cmp_lt_u32 s24, 2
        s_cselect_b32 s50, s28, s50
        s_cselect_b32 s51, s26, s51
        v_add_u32 v{self.V_QW}, s50, v40
        v_add_u32 v11, s51, v40
        v_add_u32 v31, 0x10000, v{self.V_L16}
        s_mov_b32 s42, {CSCALE:#x}
        s_mov_b32 s43, {CSCALE:#x}
        s_waitcnt lgkmcnt(0)
        """)
        lab = a.newlabel("L_nonce")
        a(f"""s_or_b32 s50, s2, s24
        s_cmp_lg_u32 s50, 0
        s_cbranch_scc1 {lab}
        s_memrealtime s[50:51]
        s_waitcnt lgkmcnt(0)
        s_or_b32 s50, s50, 1
        v_mov_b32 v39, 0
        v_mov_b32 v40, s50
        global_store_dword v39, v40, s[46:47] sc1""")
        a.label(lab)

    def ld_x(self, kc, m):
        a = self.a
        a.sset("m0", "s27", kc*24576 + m*4096); a(f"s_add_u32 s26, s{52+kc}, {m*16384}")
        a.vm(f"buffer_load_dwordx4 v{self.V_XSRC}, s[4:7], s26 offen lds", f"x{kc}")
    def ld_wq(self, ks, e):
        a = self.a
        a.sset("m0", "s32", (ks%8)*2048 + e*1024); a(f"s_add_u32 s26, s{56+(ks>>3)}, {((ks&7)*16 + e*8)*8192}")
        a.vm(f"buffer_load_dwordx4 v{self.V_WSRC}, s[8:11], s26 offen lds", f"wq{ks}")
    def ld_kreg(self, n):
        a = self.a
        g, i = n >> 3, n & 7
        a.sset("s60", f"s{94+g}", (i>>2)*4096)
        a.vm(f"buffer_load_dwordx4 {self.kland(g, i)}, v{self.V_KSRC+(i&3)}, s[12:15], s60 offen offset:{(i&3)*1024}{self.kvpol}", f"T{g}")
    def ld_piece(self, idx, i, slot=None):
        a = self.a
        item, kind, g = idx >> 3, (idx >> 2) & 1, idx & 3
        if slot is None: slot = self.slot(idx)
        srd = "s[16:19]" if kind else "s[12:15]"
        a.sset("m0", "s28", slot*8192 + (i>>2)*4096); a.sset("s29", f"s{94+g}", item*131072 + (i>>2)*4096)
        vo = self.V_VSRC if kind else self.V_KSRC + (i & 3)
        a.vm(f"buffer_load_dwordx4 v{vo}, {srd}, s29 offen offset:{(i&3)*1024}{self.kvpol} lds", f"T{idx}" if not (kind and i >= 4) else f"T{idx}b")
    def tile_fills(self, idx, lo=0, hi=8, w=24):
        if idx <= 15:
            return [(w, (lambda i=i: self.ld_piece(idx, i))) for i in range(lo, hi)]
        return [(w, (lambda i=i: self.ld_wo(idx - 16, i))) for i in range(lo, hi)]

    SCHED = {
        4: ["X1"], 5: ["X2", "Q0a", "Q0b"], 6: ["Q1a", "Q1b", "Q2a", "Q2b"], 7: ["P0", "P1"],
        8: ["P2", "P3"], 9: ["P4", "P5"], 10: ["P6", "P7"], 11: ["q0a", "q0b"],
        12: ["q1a", "q1b"], 13: ["q2a", "q2b"], 14: ["q3a", "q3b"], 15: ["p0", "p1"],
        16: ["p2", "p3"], 17: ["p4", "p5"], 18: ["p6", "p7"],
    }
    ORDER = (["X1", "X2"] + [f"Q{g}{h}" for g in range(4) for h in "ab"] + [f"P{k}" for k in range(8)] + ["E"] +
             [f"q{g}{h}" for g in range(4) for h in "ab"] + [f"p{k}" for k in range(8)] + ["e"])
    def earliest(self, idx):
        if idx < self.nreg + 3: return "X1"
        if idx == self.nreg + 3: return f"Q{self.nreg}a" if self.nreg < 4 else "P0"
        p = idx - 4
        if p < 3: return f"Q{p+1}a"
        if p == 3: return "P0"
        g = p & 3
        if p in (4, 5, 6): return f"P{2*g+2}"
        if p == 7: return "E"
        if p in (8, 9, 10): return f"q{g+1}a"
        if p == 11: return "p0"
        return f"p{2*g+2}"
    def seg_fills(self, seg):
        sch = dict(self.SCHED); sch.update(self.opt.get("sched", {}))
        out = []
        for idx in sorted(sch):
            segs = sch[idx]
            if seg in segs:
                assert self.ORDER.index(segs[0]) >= self.ORDER.index(self.earliest(idx)), (idx, segs)
                k = segs.index(seg); n = len(segs)
                out += self.tile_fills(idx, 8 * k // n, 8 * (k + 1) // n)
        return out

    def q_fills(self, tau):
        kskip = self.opt.get("kskip", 2)
        f = []
        if tau < 32: f += [(1, lambda e=e: self.ld_wq(tau, e)) for e in range(2)]
        c = (tau >> 3) + 1
        if c <= 3 and 1 <= (tau & 7) <= 6: f.append((1, lambda: self.ld_x(c, (tau & 7) - 1)))
        if self.opt.get("kpos"):
            if any(tau in d for d in self.opt["kpos"].values()): f.append((1, lambda: self.k_burst(tau)))
            for g, (t0, per) in self.opt.get("kspread", {}).items():
                for n in range(8):
                    if t0 + n // per == tau: f.append((1, lambda g=g, n=n: self.ld_kreg(g * 8 + n)))
                self.k_exact.add(g)
            return f
        if tau >= kskip and self.kplan < 32:
            n = self.kplan; self.kplan += 1
            f.append((1, lambda: self.ld_kreg(n)))
        return f
    def k_burst(self, tau):
        a = self.a
        ds = list(self.opt["kpos"].values())
        if all(d.get(tau) == ds[0].get(tau) for d in ds):
            for g in ds[0].get(tau, []):
                for i in range(8): self.ld_kreg(g * 8 + i)
                self.k_exact.add(g)
            return
        save = list(a.vmq)
        for ph, d in sorted(self.opt["kpos"].items()):
            if tau in d:
                lab = a.newlabel("L_kb")
                a(f"s_cmp_lg_u32 s61, {ph}\ns_cbranch_scc1 {lab}")
                for g in d[tau]:
                    for i in range(8): self.ld_kreg(g * 8 + i)
                a.label(lab)
        a.vmq = save
    def k_model(self):
        rest = [g for g in range(self.nreg) if g not in self.k_exact]
        if rest:
            q = self.a.vmq
            k = min([i for i, t in enumerate(q) if t[0] == "T"], default=len(q))
            assert all(min(self.k_exact, default=9) > g for g in rest)
            self.a.vmq = q[:k] + [f"T{g}" for g in rest for _ in range(8)] + q[k:]
    def q_read_ops(self, ks):
        a = self.a
        b = 32 + (ks & 1) * 20
        kc, jj = ks >> 3, ks & 7
        w = lambda t, u: (lambda: a.ds(f"ds_read_b64_tr_b16 {vr(b + t*4 + u*2, 2)}, v{self.V_WA+t} offset:{(ks%8)*2048 + u*512}", f"qw{ks}_{t}"))
        x = lambda i: (lambda: a.ds(f"ds_read_b128 {vr(b + 8 + i*4, 4)}, v{self.V_KA+jj} offset:{(kc&1)*24576 + i*8192}", f"qx{ks}_{i}"))
        return [w(0, 0), w(0, 1), x(0), x(1), x(2), w(1, 0), w(1, 1)]
    def qphase(self):
        a = self.a
        self.kplan = 0
        if self.opt.get("poison", "none") == "start":
            for _, f in self.poison_fills(76): f()
        if self.opt.get("kpos"):
            a(self.opt.get("ksel", "s_lshr_b32 s61, s34, 3\ns_add_u32 s61, s61, s3") + f"\ns_and_b32 s61, s61, {len(self.opt['kpos'])-1}")
            self.k_burst(-1)
        for m in range(6): self.ld_x(0, m)
        for _, f in self.q_fills(0): f()
        self.setup2()
        if self.opt.get("poison", "none") == "start2":
            for _, f in self.poison_fills(76): f()
        for tau in range(1, 7):
            for _, f in self.q_fills(tau): f()
        a.wait(vm=["x0", "wq0"])
        a("s_barrier")
        self.stamp()
        for f in self.q_read_ops(0): f()
        sc = Sched()
        for ks in range(32):
            b = 32 + (ks & 1) * 20
            base = len(sc.mains)
            for t in range(2):
                for i in range(3):
                    def mf(t=t, i=i, ks=ks, b=b):
                        a.wait(lg=[f"qw{ks}_{t}", f"qx{ks}_{i}"])
                        acc = vr(self.QACC + (t * 3 + i) * 16, 16)
                        a(f"{MF32} {acc}, {vr(b + t*4, 4)}, {vr(b + 8 + i*4, 4)}, {acc if ks else 0}")
                    sc.main(mf)
            if ks + 1 < 32:
                def pre(ks=ks):
                    a.wait(vm=[f"wq{ks+1}", f"x{(ks+1)>>3}"])
                    if (ks + 1) % 8 == 0: a("s_barrier")
                    if ks + 1 == 16:
                        for j in range(8): a(f"v_add_u32 v{self.V_KA+j}, 49152, v{self.V_KA+j}")
                sc.at(base + 0.0, pre)
                for k, f in enumerate(self.q_read_ops(ks + 1)): sc.at(base + [0.1, 0.2, 1.1, 2.1, 3.1, 4.1, 4.2][k], f)
            if self.opt.get("wopf") == f"k{ks}": sc.at(base + 4.6, self.wopf_early)
            if ks == 16:
                sc.at(base + 5.0, lambda: (a("v_mov_b32 v73, 0"), a.vm("global_load_dword v72, v73, s[46:47] sc1", "nonce")))
            for k, (_, f) in enumerate(self.q_fills(ks + 7)): sc.at(base + [1.5, 2.5, 3.5, 5.5, 0.5, 4.5, 5.6, 5.7][k], f)
        sc.emit()
        if self.opt.get("kpos"):
            self.k_burst(99)
        else:
            while self.kplan < 32:
                self.ld_kreg(self.kplan); self.kplan += 1
        a(f"s_sub_u32 s50, s28, {XB + 49152}")
        for j in range(8): a(f"v_add_u32 v{self.V_KA+j}, s50, v{self.V_KA+j}")
        a.wait(vm="nonce")
        a("v_readfirstlane_b32 s62, v72")
        if self.opt.get("kpos"): self.k_model()
        a("s_barrier")
        self.stamp()
        mains = []
        for t in range(2):
            for i in range(3):
                def cv(t=t, i=i):
                    tb = self.QACC + (t * 3 + i) * 16
                    for k in range(8): a(f"v_pk_mul_f32 {vr(tb+2*k, 2)}, {vr(tb+2*k, 2)}, s[42:43]")
                    for k in range(8): a(f"v_cvt_pk_bf16_f32 v{tb+k}, v{tb+2*k}, v{tb+2*k+1}")
                    for u in range(2):
                        for pc in range(2):
                            f = (t*2+u)*3+i
                            a.ds(f"ds_write_b64 v{self.V_QW if f < 8 else 11}, {vr(tb + u*4 + pc*2, 2)} offset:{(f%8)*1024 + pc*512}", "qw")
                mains.append(cv)
        interleave(mains, self.seg_fills("X1"), first=24)
        a.wait(lg="all")
        a("s_barrier")
        for r in range(4): a(f"v_mov_b32 v{self.V_ONES+r}, 0x3f803f80")
        xh2 = self.opt.get('map', 'xh2') == 'xh2'
        a(f"""
        s_mov_b32 s4, s40
        s_mov_b32 s5, s41
        s_mov_b32 s6, 4194304
        s_lshr_b32 s50, s37, 1
        s_and_b32 s51, s3, 3
        s_lshl_b32 s50, s50, {3 if xh2 else 1}
        s_lshl_b32 s51, s51, {1 if xh2 else 3}
        s_add_u32 s50, s50, s51
        s_and_b32 s51, s37, 1
        s_add_u32 s50, s50, s51
        s_lshl_b32 s32, s50, 17
        s_lshl_b32 s50, s24, 15
        s_add_u32 s32, s32, s50
        s_lshr_b32 s50, s34, 3
        s_lshl_b32 s50, s50, 8
        s_add_u32 s32, s32, s50
        """)
        mains = []
        late = []
        for hd in range(2):
            for sp in range(8):
                for i in range(3):
                    f = (sp & 3) * 3 + i; ws = 2 * hd + (sp >> 2)
                    dst = ar(hd * 96 + (sp * 3 + i) * 4, 4)
                    if hd == 0: t = f"ds_read_b128 {dst}, v{self.V_L16 if f < 8 else 31} offset:{ws*32768 + (f%8)*1024}"
                    else: t = f"ds_read_b128 {dst}, v{self.V_PR} offset:{(ws&1)*12288 + f*1024}"
                    if hd == 1: late.append(t)
                    else: mains.append(lambda t=t: a.ds(t, "qx"))
        self.q2late = late
        self.nonce_check()
        if self.opt.get("local", 1):
            a(f"""s_getreg_b32 s50, hwreg(HW_REG_XCC_ID)
            s_lshl_b32 s50, s50, 1
            s_and_b32 s50, s50, 30
            s_xor_b32 s36, s62, s50
            v_mov_b32 v20, s31
            v_mov_b32 v21, s36""")
            a.vm("global_store_dword v20, v21, s[48:49] offset:-4096 sc1", "idst")
            self.p3_flagaddr()
        interleave(mains, self.seg_fills("X2"))
        a.wait(lg="all")
        a("s_barrier")
        self.stamp()
    def wopf_early(self):
        a = self.a
        xh2 = self.opt.get('map', 'xh2') == 'xh2'
        a(f"""
        s_lshr_b32 s50, s37, 1
        s_and_b32 s51, s3, 3
        s_lshl_b32 s50, s50, {3 if xh2 else 1}
        s_lshl_b32 s51, s51, {1 if xh2 else 3}
        s_add_u32 s50, s50, s51
        s_and_b32 s51, s37, 1
        s_add_u32 s50, s50, s51
        s_lshl_b32 s51, s50, 17
        s_lshl_b32 s50, s24, 15
        s_add_u32 s51, s51, s50
        s_lshr_b32 s50, s34, 3
        s_lshl_b32 s50, s50, 8
        s_add_u32 s51, s51, s50
        v_lshrrev_b32 v74, 8, v28
        v_and_b32 v75, 0x80, v28
        v_lshl_add_u32 v74, v74, 10, v75
        v_add_u32 v74, s51, v74""")
        a.vm("global_load_dword v0, v74, s[40:41]", "pfw")
    def wopf2_fills(self):
        a = self.a
        def f():
            a(f"""s_and_b32 s50, s37, 1
            s_lshl_b32 s51, s50, 17
            s_lshl_b32 s50, s50, 14
            s_sub_u32 s26, s32, s51
            s_add_u32 s26, s26, s50
            s_add_u32 s26, s26, 131072
            v_and_b32 v20, 0xf00, v28
            v_and_b32 v21, 0x80, v28
            v_lshl_add_u32 v20, v20, 2, v21""")
            a.vm(f"buffer_load_dword v0, v20, s[4:7], s26 offen", "pfw")
        return [(24, f)]
    def wopf_fills(self):
        a = self.a
        def f():
            a(f"""v_lshrrev_b32 v20, 8, v28
            v_and_b32 v21, 0x80, v28
            v_lshl_add_u32 v20, v20, 10, v21""")
            a.vm(f"buffer_load_dword v0, v20, s[4:7], s32 offen", "pfw")
        return [(24, f)]
    def poison_fills(self, R=232):
        a = self.a
        def f(k):
            if k == 0:
                for r in range(4): a(f"v_mov_b32 v{R+r}, -1")
            a(f"s_add_u32 s26, s33, {24576 + k*1024}")
            a.vm(f"buffer_store_dwordx4 {vr(R, 4)}, v{self.V_L16}, s[20:23], s26 offen sc1", "poison")
        return [(24, lambda k=k: f(k)) for k in range(6)]
    def q2_fills(self):
        a = self.a
        return [(8, lambda t=t: a.ds(t, "q2")) for t in self.q2late]

    def k_write(self, g, i):
        self.a.ds(f"ds_write_b128 v{self.V_LIN}, {self.kland(g, i)} offset:{self.slot(g)*8192 + i*1024}", "kw")
    def k_read(self, idx, j):
        self.a.ds(f"ds_read_b128 {vr(self.V_F + j*4, 4)}, v{self.V_KA+j} offset:{self.slot(idx)*8192}", f"kf{idx}_{j}")
    def exp_fills(self, g, halves=(0, 1)):
        a = self.a
        f = []
        for s in halves:
            for i in range(3):
                b = self.S(g, i)
                for r in range(8*s, 8*s+8): f.append((8, lambda r=r, b=b: a(f"v_exp_f32 v{b+r}, v{b+r}")))
                for k in range(4):
                    f.append((4, lambda b=b, k=k, s=s, i=i: a(f"v_cvt_pk_bf16_f32 v{self.P(g, i, s)+k}, v{b+8*s+2*k}, v{b+8*s+2*k+1}")))
        return f
    def qk_tile(self, item, g):
        a = self.a
        idx = item * 8 + g
        if g == 0:
            a.wait(vm=f"T{idx}")
            self.tstamp()
            if item == 0:
                for i in range(8): self.k_write(0, i)
            for j in range(4): self.k_read(idx, j)
        sc = Sched()
        for j in range(8):
            for i in range(3):
                def m(j=j, i=i):
                    if i == 0: a.wait(lg=f"kf{idx}_{j}")
                    d = vr(self.S(g, i), 16)
                    a(f"{MF32} {d}, {vr(self.V_F + j*4, 4)}, {ar(item*96 + (j*3+i)*4, 4)}, {d if j else 0}")
                sc.main(m)
        for j in range(4, 8): sc.at(j - 4 + 0.0, lambda j=j: self.k_read(idx, j))
        def mid():
            if g < 3:
                a.wait(vm=f"T{idx+1}")
                self.tstamp()
            if item == 1 and g == self.opt.get("pub0at", 1): a.wait(vm="O0")
            if item == 1 and "O0" not in a.vmq and not self.fl0_done:
                self.fl0_done = True
                self.flag_store(0)
        staged = item == 0 and g + 1 < self.nreg
        sc.at(4.0 if staged else 12.0, mid)
        if g < 3:
            if staged:
                for i in range(8): sc.at(4.1 + i, lambda i=i: self.k_write(g + 1, i))
            for j in range(4): sc.at(13.0 + 3 * j, lambda j=j: self.k_read(idx + 1, j))
        ex = self.exp_fills(g - 1) if g > 0 else []
        other = []
        if item == 0 and g == 0: other = self.q2_fills()
        if g == 3: other = [(16, lambda i=i: self.p_write(0, i)) for i in range(3)]
        if item == 0 and g == 2 and self.opt.get("poison", "none") == "Q2": other = self.poison_fills()
        if item == 0 and g == 3 and self.opt.get("wopf", 1) == 1: other = other + self.wopf_fills()
        if item == 1 and g == 3: other = [(24, lambda: (self.p3_flagaddr(), self.flag_load(0)))] + other
        if item == 0 and g == 3 and self.opt.get("local", 1):
            other = other + [(24, lambda: a.vm(f"global_load_dword v{self.V_FR}, v{self.V_FL}, s[48:49] offset:-4096 sc1", "ids"))]
        seg = ("Q" if item == 0 else "q") + str(g)
        if self.opt.get("wopf") == seg: other = other + self.wopf_fills()
        if ex: sc.spread(ex, 3.0, 24)
        if other: sc.spread(other, 0.5, 24)
        for h, (lo, hi) in zip("ab", ((0.5, 12), (12.5, 24))):
            f = self.seg_fills(seg + h)
            if f: sc.spread(f, lo, hi)
        sc.emit()
        if item == 0 and g == 1: a("s_barrier")

    def p_write(self, hf, i):
        a = self.a
        g, s = hf >> 1, hf & 1
        if 1:
            a.ds(f"ds_write_b128 v{self.V_PW}, {vr(self.P(g, i, s), 4)} offset:{s*12288 + i*1024}", "pw")
    def pv_buf(self, n):
        return [("v", self.V_F), ("v", self.V_F + 16), ("a", self.A_F)][n % 3]
    def pv_read_ops(self, sl, s, wsrc, n):
        a = self.a
        f, b = self.pv_buf(n)
        ops = [(lambda u=u: a.ds(f"ds_read_b64_tr_b16 {vr(b + 2*u, 2, f)}, v{self.V_VA + (wsrc>>1)} offset:{(wsrc&1)*32768 + sl*8192 + (16*s + 8*u)*256}", f"pv{n}_0")) for u in range(2)]
        ops += [(lambda i=i: a.ds(f"ds_read_b128 {vr(b + 4 + 4*i, 4, f)}, v{self.V_PR} offset:{s*12288 + wsrc*3072 + i*1024}", f"pv{n}_{i}")) for i in range(3)]
        return ops
    def pv_reads(self, sl, s, wsrc, n):
        for f in self.pv_read_ops(sl, s, wsrc, n): f()
    ONES_AT = {0: (0, 1), 1: (2, 3), 2: (4,), 3: (5,), 4: (6,), 5: (7,)}
    RPOS = [0.1, 0.2, 0.3, 1.1, 2.1]
    def pv(self, item):
        a = self.a
        sc = Sched()
        gstart = {}; sub = {}
        for hf in range(8):
            sub[hf] = len(sc.mains)
            for wsrc in range(4):
                n = hf * 4 + wsrc
                if wsrc == (0 if hf == 0 else 1):
                    for k in self.ONES_AT.get(hf, ()):
                        for i in range(3):
                            def o(k=k, i=i):
                                d = vr(self.SB[0] + i * 16, 16)
                                a(f"{MF32} {d}, {vr(self.V_ONES, 4)}, {vr(self.P(k >> 1, i, k & 1), 4)}, {d if k else 0}")
                            sc.main(o)
                gstart[n] = len(sc.mains)
                for i in range(3):
                    def m(n=n, i=i):
                        a.wait(lg=[f"pv{n}_0", f"pv{n}_{i}"])
                        f, b = self.pv_buf(n)
                        d = ar(self.A_O + i * 16, 16)
                        a(f"{MF32} {d}, {vr(b, 4, f)}, {vr(b + 4 + 4*i, 4, f)}, {d if n else 0}")
                    sc.main(m)
        sub[8] = len(sc.mains)
        bar = {}
        for hf in range(8):
            g, s = hf >> 1, hf & 1
            idx = item * 8 + 4 + g
            def sync(hf=hf, s=s, idx=idx):
                if self.opt.get("halfv", 1): a.wait(vm=(f"T{idx}" if s == 0 else f"T{idx}b"), lg="all")
                else: a.wait(vm=([f"T{idx}", f"T{idx}b"] if s == 0 else None), lg="all")
                if s == 0: self.tstamp()
                a("s_barrier")
                if item == 1 and hf == self.opt.get("chk0at", 1): self.flag_check(0)
            bar[hf] = -1.0 if hf == 0 else gstart[4 * hf - 2] - 0.05
            sc.at(bar[hf], sync)
            for wsrc in range(4):
                n = hf * 4 + wsrc
                ops = self.pv_read_ops(self.slot(idx), s, wsrc, n)
                for k, f in enumerate(ops):
                    if n < 2: sc.at(-0.9 + 0.1 * n + 0.01 * k, f)
                    elif wsrc == 0: sc.at(gstart[n - 2] + [-0.04, -0.03, -0.02, 0.1, 1.1][k], f)
                    else: sc.at(gstart[n - 2] + self.RPOS[k], f)
        bar[8] = sub[8]
        if self.opt.get("earlysum", 1):
            sc.at(bar[7] + 3.3, lambda: self.sum_reads())
            sc.at(bar[7] + 9.3, lambda: self.sum_eval())
        for hf in range(8):
            lo, hi = max(bar[hf], 0) + 0.5, bar[hf + 1] - 0.1
            if hf + 1 < 8:
                for i in range(3): sc.at(lo + 1.0 + 2 * i, lambda hf=hf, i=i: self.p_write(hf + 1, i))
            ld = self.seg_fills(("P" if item == 0 else "p") + str(hf))
            ex = []
            if hf < 4:
                e = self.exp_fills(3, (hf >> 1,))
                ex = e[:len(e)//2] if hf % 2 == 0 else e[len(e)//2:]
            other = []
            if hf == 6:
                sc.at(hi - 4, lambda: [a.ds(f"ds_write_b32 v{self.V_STW}, v{self.SB[0] + i*16} offset:{1536 + i*512}", "st") for i in range(3)])
            if item == 1:
                if self.opt.get("wopf") == f"p{hf}": ld = ld + self.wopf_fills()
                c0 = self.opt.get("chk0at", 1)
                if hf >= c0:
                    self.fl0_checked = True
                    nseg = self.opt.get("ospan", 4)
                    upto = min(18, (18 * (hf - c0 + 1) + nseg - 1) // nseg)
                    other += [(24, lambda n=n: self.ld_o(1 + n // 6, n % 6)) for n in range(self.o_issued, upto)]
                    self.o_issued = upto
                if self.opt.get("wopf2") == f"p{hf}": other += self.wopf2_fills()
            for f in (ld, ex, other):
                if f: sc.spread(f, lo, hi)
        sc.emit()

    def sum_reads(self):
        T = self.SB[1]
        for i in range(3): self.a.ds(f"ds_read_b128 {vr(T + i*4, 4)}, v{self.V_STR} offset:{1536 + i*512}", f"sm{i}")
    def sum_eval(self):
        a = self.a
        T = self.SB[1]
        a(f"s_mov_b32 s50, {f2u(2.0 ** self.opt.get('lo', -30)):#x}\ns_mov_b32 s51, {f2u(2.0 ** 30):#x}")
        for i in range(3):
            a.wait(lg=f"sm{i}")
            b = T + i * 4
            a(f"v_add_f32 v{b}, v{b}, v{b+1}\nv_add_f32 v{b+2}, v{b+2}, v{b+3}\nv_add_f32 v{b}, v{b}, v{b+2}")
        a(f"""
        v_min3_f32 v{T+1}, v{T}, v{T+4}, v{T+8}
        v_max3_f32 v{T+2}, v{T}, v{T+4}, v{T+8}
        v_cmp_u_f32 vcc, v{T}, v{T+4}
        v_cmp_u_f32 s[0:1], v{T+8}, v{T+8}
        s_or_b64 s[0:1], vcc, s[0:1]
        v_cmp_nle_f32 vcc, s50, v{T+1}
        s_or_b64 s[0:1], vcc, s[0:1]
        v_cmp_nge_f32 vcc, s51, v{T+2}
        s_or_b64 s[0:1], vcc, s[0:1]
        """)
        for i in range(3): a(f"v_rcp_f32 v{T+12+2*i}, v{T+i*4}\nv_rcp_f32 v{T+13+2*i}, v{T+i*4}")
    def epilogue(self, item):
        a = self.a
        T = self.SB[1]
        if not self.opt.get("earlysum", 1):
            a.label(f"L_epi{item}")
            self.sum_reads(); self.sum_eval()
        a(f"""
        s_mov_b64 vcc, s[0:1]
        s_and_b64 vcc, vcc, s[{self.s_chk}:{self.s_chk+1}]
        s_cbranch_vccnz L_slow{item}
        """)
        if self.opt.get("earlysum", 1): a.label(f"L_epi{item}")
        a(f"s_mov_b64 s[{self.s_chk}:{self.s_chk+1}], -1")
        if item == 0 and self.opt.get("local", 1):
            a.wait(vm="ids")
            a(f"""v_cmp_ne_u32 vcc, s36, v{self.V_FR}
            s_cmp_eq_u64 vcc, 0
            s_cselect_b32 s61, {self.opt.get('force', 1)}, 0""")
        ef = self.seg_fills("E" if item == 0 else "e")
        if item == 1 and self.o_issued < 18:
            if not self.fl0_checked: self.flag_check(0)
            ol = [(24, lambda n=n: self.ld_o(1 + n // 6, n % 6)) for n in range(self.o_issued, 18)]
            k = self.opt.get("efirst", 0)
            ef = ef[:k] + merge(ol, ef[k:])
        for i in range(3):
            tb = self.V_P + i * 24
            if item == 0 or not self.opt.get("elast", 1):
                for _, f in ef[len(ef)*i//3:len(ef)*(i+1)//3]: f()
            else:
                n1 = self.opt.get("efirst", 0)
                for _, f in ef[n1*i//3:n1*(i+1)//3]: f()
            for r in range(16): a(f"v_accvgpr_read_b32 v{tb+r}, a{self.A_O + i*16 + r}")
            for r in range(8): a(f"v_pk_mul_f32 {vr(tb+2*r, 2)}, {vr(tb+2*r, 2)}, {vr(T+12+2*i, 2)}")
            if item == 0:
                for k in range(8): a(f"v_cvt_pk_bf16_f32 v{tb+16+k}, v{tb+2*k}, v{tb+2*k+1}")
                for k in range(8): a(f"v_accvgpr_write_b32 a{((k>>2)*3 + i)*4 + (k&3)}, v{tb+16+k}")
            else:
                for k in range(8):
                    dst = tb + 16 + k if k % 4 < 3 else 232 + (k >> 2) * 4 + i
                    a(f"v_cvt_pk_bf16_f32 v{dst}, v{tb+2*k}, v{tb+2*k+1}")
                a(f"v_mov_b32 v{tb+19}, s62\nv_mov_b32 v{tb+23}, s62")
                if i == 0:
                    a(f"v_mov_b32 v235, s62\nv_mov_b32 v239, s62")
                    self.o_write(0)
        regs = [self.V_P + (f % 3) * 24 + 16 + (f // 3) * 4 for f in range(6)] + ([232, 236] if item else [])
        a(f"s_add_u32 s26, s33, 0" if item == 0 else f"s_lshl_b32 s26, s24, 11\ns_add_u32 s26, s26, s33\ns_add_u32 s26, s26, 24576")
        a("s_add_u32 s50, s26, 4096")
        def stores(pol):
            for f, r in enumerate(regs):
                a(f"buffer_store_dwordx4 {vr(r, 4)}, v{self.V_L16}, s[20:23], {'s26' if f < 4 else 's50'} offen offset:{(f%4)*1024}{pol}")
        if self.opt.get("local", 1):
            far = a.newlabel("L_far"); done = a.newlabel("L_std")
            a(f"s_cmp_eq_u32 s61, 0\ns_cbranch_scc1 {far}")
            stores(self.opt.get("lspol", ""))
            a(f"s_branch {done}")
            a.label(far)
            stores(" sc1")
            a.label(done)
        else:
            stores(" sc1")
        a.vmq += [f"O{item}"] * len(regs)
        if item == 1:
            a.nop(2)
            for f in range(6): a(f"v_mov_b32 v{regs[f]+3}, v{232 + (f//3)*4 + f%3}")
            if self.opt.get("elast", 1): self.e_rest = ef[self.opt.get("efirst", 0):]
    s_chk = 38

    def item(self, item):
        for g in range(4): self.qk_tile(item, g)
        if item == 1:
            if not self.fl0_done:
                self.a.wait(vm="O0"); self.flag_store(0); self.fl0_done = True
            self.p3_setup()
        self.stamp()
        self.pv(item)
        if item == 1: self.in3 = True
        self.stamp()
        self.a("s_barrier")
        self.epilogue(item)
        self.stamp()

    def slow(self, item):
        a = self.a
        a.vmq = []; a.lgq = []
        S = lambda g, i: 64 + (g * 3 + i) * 16
        F = self.V_F; M = [29, 30, 31]; MC = [20, 21, 1]; L = [60, 61, 62]
        a.label(f"L_slow{item}")
        a("s_waitcnt vmcnt(0) lgkmcnt(0)\ns_barrier")
        a(f"s_mov_b64 s[{self.s_chk}:{self.s_chk+1}], 0")
        if item == 1:
            self.lane_parts(33); self.ksrc_addrs(33); self.ka_addrs(33, "s28")
        for g in range(4):
            for i in range(8): self.ld_piece(item * 8 + g, i, slot=g)
        a.wait(vm="all")
        for g in range(4):
            for j in range(8): a.ds(f"ds_read_b128 {vr(F + j*4, 4)}, v{self.V_KA+j} offset:{g*8192}", "kf")
            a.wait(lg="all")
            for j in range(8):
                for i in range(3):
                    d = vr(S(g, i), 16)
                    a(f"{MF32} {d}, {vr(F + j*4, 4)}, {ar(item*96 + (j*3+i)*4, 4)}, {d if j else 0}")
        for g in range(4):
            for i in range(8): self.ld_piece(item * 8 + 4 + g, i, slot=g)
        for i in range(3):
            a(f"v_mov_b32 v{M[i]}, v{S(0, i)}")
            for g in range(4):
                for k in range(8): a(f"v_max3_f32 v{M[i]}, v{M[i]}, v{S(g, i)+2*k}, v{S(g, i)+2*k+1}")
        for i in range(3): a(f"v_mov_b32 v{F+i}, v{M[i]}")
        for i in range(3): a(f"v_permlane32_swap_b32 v{M[i]}, v{F+i}")
        for i in range(3): a(f"v_max_f32 v{M[i]}, v{M[i]}, v{F+i}")
        for i in range(3): a.ds(f"ds_write_b32 v{self.V_STW}, v{M[i]} offset:{i*512}", "st")
        a.wait(lg="all")
        a("s_barrier")
        for i in range(3): a.ds(f"ds_read_b128 {vr(F + 4 + i*4, 4)}, v{self.V_STR} offset:{i*512}", "sm")
        a.wait(lg="all")
        for i in range(3):
            b = F + 4 + i * 4
            a(f"v_max3_f32 v{b}, v{b}, v{b+1}, v{b+2}\nv_max_f32 v{MC[i]}, v{b}, v{b+3}\nv_mov_b32 v{L[i]}, 0")
        for g in range(4):
            for i in range(3):
                s = S(g, i)
                for r in range(16): a(f"v_sub_f32 v{s+r}, v{s+r}, v{MC[i]}")
                for r in range(16): a(f"v_exp_f32 v{s+r}, v{s+r}")
                for k in range(8):
                    a(f"v_add_f32 v{L[i]}, v{L[i]}, v{s+2*k}\nv_add_f32 v{L[i]}, v{L[i]}, v{s+2*k+1}")
                    a(f"v_cvt_pk_bf16_f32 v{s+k}, v{s+2*k}, v{s+2*k+1}")
        for i in range(3): a(f"v_mov_b32 v{F+i}, v{L[i]}")
        for i in range(3): a(f"v_permlane32_swap_b32 v{L[i]}, v{F+i}")
        for i in range(3): a(f"v_add_f32 v{L[i]}, v{L[i]}, v{F+i}")
        for i in range(3): a.ds(f"ds_write_b32 v{self.V_STW}, v{L[i]} offset:{1536 + i*512}", "st")
        a.wait(vm="all")
        for g in range(4):
            for s in range(2):
                for i in range(3):
                    a.ds(f"ds_write_b128 v{self.V_PW}, {vr(S(g, i) + 4*s, 4)} offset:{s*12288 + i*1024}", "pw")
            a.wait(lg="all")
            a("s_barrier")
            for s in range(2):
                for wsrc in range(4):
                    self.pv_reads(g, s, wsrc, 0)
                    a.wait(lg="all")
                    for i in range(3):
                        d = ar(self.A_O + i * 16, 16)
                        a(f"{MF32} {d}, {vr(F, 4)}, {vr(F + 4 + 4*i, 4)}, {d if (g or s or wsrc) else 0}")
            a("s_barrier")
        if item == 1: self.p3_addrs(48)
        for idx in range(item * 8 + 8, item * 8 + 11):
            for _, f in self.tile_fills(idx): f()
        if self.opt.get("earlysum", 1):
            self.sum_reads(); self.sum_eval()
        if item == 0: a(f"v_not_b32 v{self.V_FR}, s36")
        a("s_waitcnt vmcnt(0)")
        a.nop(16)
        a(f"s_branch L_epi{item}")

    def p3_flagaddr(self):
        self.a(f"""
        s_and_b32 s30, s31, {(1 << 32) - 16:#x}
        v_and_b32 v{self.V_FL}, 0x30, v{self.V_L16}
        v_lshrrev_b32 v{self.V_FL}, 2, v{self.V_FL}
        v_add_u32 v{self.V_FL}, s30, v{self.V_FL}
        """)
    def p3_setup(self):
        a = self.a
        xh2 = self.opt.get('map', 'xh2') == 'xh2'
        a(f"""
        s_lshr_b32 s50, s34, 3
        s_and_b32 s51, s3, 3
        s_lshl_b32 s60, s35, 3
        s_add_u32 s60, s60, s37
        """)
        a(f"""
        s_lshl_b32 s42, s60, 2
        s_add_u32 s42, s42, s50
        s_mul_i32 s42, s42, {16*8192}
        s_lshl_b32 s63, s24, 11
        s_add_u32 s42, s42, s63
        """)
        a(f"""
        s_mul_i32 s43, s37, 43
        s_lshr_b32 s43, s43, 7
        s_mul_i32 s43, s43, 3
        s_sub_u32 s43, s37, s43
        """)
        for j in range(4):
            if j == 0: a("s_mov_b32 s26, s50")
            else:
                if self.opt.get("rot3", 1):
                    a(f"""s_add_u32 s26, s43, {j-1}
                    s_cmp_ge_u32 s26, 3
                    s_cselect_b32 s63, 3, 0
                    s_sub_u32 s26, s26, s63
                    s_add_u32 s26, s26, 1""")
                else: a(f"s_mov_b32 s26, {j}")
                a("s_add_u32 s26, s26, s50\ns_and_b32 s26, s26, 3")
            if xh2: a("s_lshl_b32 s26, s26, 3\ns_lshl_b32 s63, s51, 1\ns_add_u32 s26, s26, s63")
            else: a("s_lshl_b32 s26, s26, 1\ns_lshl_b32 s63, s51, 3\ns_add_u32 s26, s26, s63")
            a(f"""s_lshl_b32 s{56+j}, s26, 17
            s_lshl_b32 s63, s24, 15
            s_add_u32 s{56+j}, s{56+j}, s63
            s_lshl_b32 s63, s50, 8
            s_add_u32 s{56+j}, s{56+j}, s63
            s_lshl_b32 s63, s60, 5
            s_add_u32 s26, s26, s63
            s_mul_i32 s{52+j}, s26, 28672
            s_mul_i32 s63, s24, 6144
            s_add_u32 s{52+j}, s{52+j}, s63""")
        a(f"""
        s_mul_i32 s27, s37, 96
        s_lshl_b32 s63, s51, 3
        s_add_u32 s27, s27, s63
        s_lshl_b32 s27, s27, 11
        s_lshl_b32 s63, s35, 10
        s_add_u32 s27, s27, s63
        s_lshl_b32 s63, s50, 8
        s_add_u32 s27, s27, s63
        s_and_b32 s63, s24, 1
        s_lshl_b32 s63, s63, 7
        s_add_u32 s27, s27, s63
        s_lshr_b32 s63, s24, 1
        s_lshl_b32 s63, s63, 6
        s_add_u32 s27, s27, s63
        s_mov_b32 s8, s44
        s_mov_b32 s9, s45
        s_mov_b32 s10, 1572864
        s_mov_b32 s36, s51
        """)
        self.p3_addrs(48)
    def p3_addrs(self, t):
        a = self.a
        self.lane_parts(t)
        a(f"""
        v_lshlrev_b32 v{t+5}, 2, v{t+1}
        v_xor_b32 v{t+5}, v{t+2}, v{t+5}
        v_lshlrev_b32 v{t+5}, 4, v{t+5}
        v_lshl_add_u32 v{self.V_WO}, v{t+1}, 10, v{t+5}
        v_add_u32 v{self.V_WO+1}, 3072, v{self.V_WO}
        v_add_u32 v{self.V_WO+2}, 6144, v{self.V_WO}
        v_add_u32 v{self.V_WO+3}, 9216, v{self.V_WO}
        v_lshlrev_b32 v{t+5}, 1, v{t+4}
        v_lshl_add_u32 v{self.V_OUT}, v{t+3}, 13, v{t+5}
        v_add_u32 v{self.V_LIN}, s28, v{self.V_L16}
        v_add_u32 v31, 0x10000, v{self.V_L16}
        s_lshl_b32 s26, s24, 11
        v_add_u32 v19, s26, v{self.V_L16}
        s_xor_b32 s50, s24, 1
        s_mul_i32 s26, s50, 3072
        v_add_u32 v{self.V_PO}, s26, v{self.V_PR}
        s_lshl_b32 s26, s50, 15
        v_add_u32 v{self.V_PO+1}, s26, v{self.V_L16}
        s_xor_b32 s26, s28, 0x10000
        v_add_u32 v31, s26, v{self.V_L16}
        """)
        for src in range(2):
            for ntl in range(2):
                a(f"""s_and_b32 s26, s24, 1
                s_lshl_b32 s26, s26, 1
                s_lshr_b32 s50, s24, 1
                s_xor_b32 s50, s50, {ntl}
                s_add_u32 s26, s26, s50
                s_xor_b32 s26, s26, s24
                s_lshl_b32 s26, s26, 6
                v_xor_b32 v{t+5}, s26, v{self.V_VA}
                s_xor_b32 s26, s28, {src << 15}
                v_add_u32 v{self.V_TR + src*2 + ntl}, s26, v{t+5}""")
    def nonce_check(self):
        a = self.a
        lab = a.newlabel("L_np"); ok = a.newlabel("L_nok")
        a(f"""
        s_mov_b32 s63, 0
        s_cmp_lg_u32 s62, 0
        s_cbranch_scc1 {ok}
        """)
        a.label(lab)
        a(f"""
        v_mov_b32 v20, 0
        global_load_dword v21, v20, s[46:47] sc1
        s_waitcnt vmcnt(0)
        v_readfirstlane_b32 s62, v21
        s_add_u32 s63, s63, 1
        s_cmp_ge_u32 s63, {SPIN_MAX}
        s_cbranch_scc1 {ok}
        s_cmp_eq_u32 s62, 0
        s_cbranch_scc1 {lab}
        """)
        a.label(ok)
        a(f"""
        s_lshl_b32 s31, s35, 3
        s_add_u32 s31, s31, s37
        s_lshl_b32 s31, s31, 2
        s_and_b32 s60, s3, 3
        s_add_u32 s31, s31, s60
        s_lshl_b32 s31, s31, 2
        s_add_u32 s31, s31, s24
        s_lshl_b32 s31, s31, 2
        s_lshr_b32 s60, s34, 3
        s_add_u32 s31, s31, s60
        s_lshl_b32 s31, s31, 2
        s_add_u32 s31, s31, {FLAG_OFF}
        """)
    def flag_store(self, rnd):
        a = self.a
        assert f"O{rnd}" not in a.vmq
        a(f"s_add_u32 s26, s31, {rnd*4096}\nv_mov_b32 v20, s26\nv_mov_b32 v21, s62")
        a.vm(f"global_store_dword v20, v21, s[48:49] sc1", f"fs{rnd}")
    def fl_ins(self, rnd):
        if rnd == 2: return f"global_load_dword v{self.V_FR}, v{self.V_FL2}, s[48:49] sc1"
        return f"global_load_dword v{self.V_FR}, v{self.V_FL}, s[{[48, 42][rnd]}:{[49, 43][rnd]}] sc1"
    def flag_load(self, rnd):
        self.a.vm(self.fl_ins(rnd), f"fl{rnd}")
    def flag_check(self, rnd):
        a = self.a
        a.wait(vm=f"fl{rnd}")
        lab = a.newlabel("L_poll"); ok = a.newlabel("L_pok")
        a(f"""
        v_cmp_ne_u32 vcc, s62, v{self.V_FR}
        s_mov_b32 s63, 0
        s_cbranch_vccz {ok}
        """)
        a.label(lab)
        a(f"""
        {self.fl_ins(rnd)}
        s_add_u32 s63, s63, 1
        s_waitcnt vmcnt(0)
        v_cmp_ne_u32 vcc, s62, v{self.V_FR}
        s_cmp_ge_u32 s63, {SPIN_MAX}
        s_cbranch_scc1 {ok}
        s_cbranch_vccnz {lab}
        """)
        a.label(ok)
    def p3_buf(self, n):
        return ("a", 96 + (n % (self.opt.get("p3d", 2) + 1)) * 16)
    def wo_slot(self, h): return self.slot(12 + h % 3)
    def ld_wo(self, h, i):
        a = self.a
        a.sset("m0", "s28", self.wo_slot(h)*8192 + (i>>2)*4096); a.sset("s43", f"s{56 + (h&3)}", (h>>2)*131072 + (i>>2)*16384)
        a.vm(f"buffer_load_dwordx4 v{self.V_WO+(i&3)}, s[4:7], s43 offen offset:{(i&3)*1024}{self.opt.get('wopol','')} lds", f"w{h}")
    def o_reg(self, h, f):
        if h == 4: return vr(self.V_P + (f % 3) * 24 + 16 + (f // 3) * 4, 4)
        if h < 4: return ar(h * 24 + f * 4, 4)
        return vr(self.o2base((h - 5) * 8 + f), 4)
    def o2base(self, q):
        return ([32 + 4*k for k in range(8)] + [112 + 4*k for k in range(16)])[q]
    def ld_o(self, h, f):
        a = self.a
        if h < 5:
            a.sset("s30", f"s{52 + (h&3)}", (f//4)*4096)
            a.vm(f"buffer_load_dwordx4 {self.o_reg(h, f)}, v{self.V_L16}, s[20:23], s30 offen offset:{(f%4)*1024}{self.opt.get('olpol', ' sc1')}", f"o{h}")
        else:
            a.sset("s30", f"s{52 + (h&3)}", 24576 + (f//4)*4096)
            a.vm(f"buffer_load_dwordx4 {vr(self.o2base((h-5)*8 + f), 4)}, v19, s[20:23], s30 offen offset:{(f%4)*1024}{self.opt.get('olpol', ' sc1')}", f"o{h}")
    def o_check(self, h):
        a = self.a
        a.wait(vm=f"o{h}")
        if h >= 5:
            r = [self.o2base((h - 5) * 8 + f) for f in range(8)]
            lab = a.newlabel("L_op"); ok = a.newlabel("L_ook"); chk = a.newlabel("L_ochk")
            a(f"s_mov_b32 s63, 0\ns_branch {chk}")
            a.label(lab)
            save = list(a.vmq)
            for f in range(8): self.ld_o(h, f)
            a.vmq = save
            a("s_waitcnt vmcnt(0)")
            a.label(chk)
            a(f"""
            v_min3_u32 v20, v{r[0]+3}, v{r[1]+3}, v{r[2]+3}
            v_max3_u32 v21, v{r[0]+3}, v{r[1]+3}, v{r[2]+3}
            v_min3_u32 v20, v20, v{r[3]+3}, v{r[4]+3}
            v_max3_u32 v21, v21, v{r[3]+3}, v{r[4]+3}
            v_min3_u32 v20, v20, v{r[5]+3}, v{r[6]+3}
            v_max3_u32 v21, v21, v{r[5]+3}, v{r[6]+3}
            v_min_u32 v20, v20, v{r[7]+3}
            v_max_u32 v21, v21, v{r[7]+3}
            v_xor_b32 v20, s62, v20
            v_xor_b32 v21, s62, v21
            v_or_b32 v20, v20, v21
            s_add_u32 s63, s63, 1
            v_cmp_ne_u32 vcc, 0, v20
            s_cmp_ge_u32 s63, {SPIN_MAX}
            s_cbranch_scc1 {ok}
            s_cbranch_vccnz {lab}
            """)
            a.label(ok)
            for f in range(6): a(f"v_mov_b32 v{r[f]+3}, v{r[6 + f//3] + f%3}")
    def o_write1(self, h, f):
        a = self.a
        if h % 2 == 0: a.ds(f"ds_write_b128 v{self.V_PW}, {self.o_reg(h, f)} offset:{(f//3)*12288 + (f%3)*1024}", "ow")
        else: a.ds(f"ds_write_b128 v{self.V_LIN}, {self.o_reg(h, f)} offset:{self.slot(15)*8192 + f*1024}", "ow")
    def o_write(self, h):
        self.o_check(h)
        for f in range(6): self.o_write1(h, f)
    ACC3 = [[64, 80, 96], [184, 208, 240]]
    def phase3(self):
        a = self.a
        ACC = 64
        D = self.opt.get("p3d", 3)
        o2at = self.opt.get("o2at", 3)
        sc = Sched()
        def groups(h):
            g = [(src, s, ntl) for src in range(2) for s in range(2) for ntl in range(2)]
            return g if h < 7 else sorted(g, key=lambda x: -x[2])
        first = {0: True, 1: True}
        for h in range(8):
            for g, (src, s, ntl) in enumerate(groups(h)):
                n = h * 8 + g
                for i in range(3):
                    def m(n=n, i=i, h=h, src=src, s=s, ntl=ntl, z=first[ntl]):
                        a.wait(lg=[f"r{n}"] + ([f"po{h}_{s*3+i}"] if src else []))
                        d = vr(self.ACC3[ntl][i], 16)
                        A = ar(96 + (h & 1) * 24 + (s * 3 + i) * 4, 4) if src else self.o_reg(h, s * 3 + i)
                        a(f"{MF32} {d}, {A}, {ar(144 + (n % (D + 1)) * 4, 4)}, {0 if z else d}")
                    sc.main(m)
                first[ntl] = False
        for h in range(8):
            def sync(h=h):
                a.wait(vm=f"w{h}", lg="all")
                a("s_barrier")
                if h in self.opt.get("p3st", (5,)): self.stamp()
            bar = -1.0 if h == 0 else (8 * h - D) * 3 - 0.05
            sc.at(bar, sync)
            for g, (src, s, ntl) in enumerate(groups(h)):
                n = h * 8 + g
                for u in range(2):
                    f = lambda n=n, h=h, src=src, s=s, ntl=ntl, u=u: a.ds(
                        f"ds_read_b64_tr_b16 {ar(144 + (n % (D + 1)) * 4 + 2*u, 2)}, v{self.V_TR + src*2 + ntl} offset:{self.wo_slot(h)*8192 + (16*s + 8*u)*256}", f"r{n}")
                    if n < D: sc.at(-0.9 + 0.1 * n + 0.01 * u, f)
                    elif g == 0: sc.at((n - D) * 3 + [-0.04, 0.1][u], f)
                    else: sc.at((n - D) * 3 + [0.1, 1.1][u], f)
            lo = max(bar, 0) + 0.5; hi = (8 * (h + 1) - D) * 3 - 0.1
            for f in range(6):
                off = (f // 3) * 12288 + (f % 3) * 1024 if h % 2 == 0 else self.slot(15) * 8192 + f * 1024
                sc.at(lo + 1.7 + (1.0 if h < 7 else 0.5) * f, lambda f=f, h=h, off=off: a.ds(
                    f"ds_read_b128 {ar(96 + (h & 1) * 24 + f * 4, 4)}, v{self.V_PO + (h & 1)} offset:{off}", f"po{h}_{f}"))
            if h + 1 < 8:
                ow = lo + (self.opt.get("owat", 8) if h < 4 else self.opt.get("owat2", 8))
                ow = min(ow, hi - 5)
                sp = min(2.0, (hi - 1.0 - ow) / 6)
                sc.at(ow, lambda h=h: self.o_check(h + 1))
                for f in range(6): sc.at(ow + 0.1 + sp * f, lambda h=h, f=f: self.o_write1(h + 1, f))
            fills = []
            if h == 0: fills += self.e_rest
            if h >= 1 and h + 2 < 8: fills += [(1, lambda i=i, h=h: self.ld_wo(h + 2, i)) for i in range(8)]
            o2 = []
            for hh, st in zip((5, 6, 7), self.opt.get("o2steps", (o2at, o2at + 1, o2at + 2))):
                if st == h: o2 += [(1, lambda f=f, hh=hh: self.ld_o(hh, f)) for f in range(8)]
            fills = fills + o2 if self.opt.get("wofirst", 1) else o2 + fills
            if fills: sc.spread(fills, lo, hi)
        red = lambda k: (self.wo_slot(5) * 8192 + k * 1024) if k < 8 else (self.wo_slot(6) * 8192 + (k - 8) * 1024)
        for k in range(12):
            sc.at(56 * 3 + 12 + 3.2 + 0.7 * k, lambda k=k: a.ds(f"ds_write_b128 v{self.V_LIN}, {vr(self.ACC3[1][k >> 2] + (k & 3) * 4, 4)} offset:{red(k)}", "rw"))
        def prep():
            a(f"""
            s_mov_b32 s16, s48
            s_mov_b32 s17, s49
            s_add_u32 s16, s16, {PART_OFF}
            s_addc_u32 s17, s17, 0
            s_mov_b32 s18, {PART_BYTES}
            s_lshl_b32 s50, s36, 13
            s_add_u32 s50, s50, s42
            s_lshl_b32 s51, s36, 15
            s_add_u32 s51, s51, s42
            """)
            for j in range(1, 4):
                a(f"s_add_u32 s{56+j}, s36, {j}\ns_and_b32 s{56+j}, s{56+j}, 3\ns_lshl_b32 s{56+j}, s{56+j}, 13\ns_add_u32 s{56+j}, s{56+j}, s51")
        sc.at(64 * 3 - 12, prep)
        for d in range(4):
            for q in range(2): sc.at(64 * 3 - 10 + d * 2 + q, lambda d=d, q=q: a(f"v_mov_b32 v{32 + d*8 + q*4 + 3}, s62"))
        sc.emit()
        a.wait(lg="all")
        a("s_barrier")
        for k in range(12): a.ds(f"ds_read_b128 {vr(112 + k*4, 4)}, v31 offset:{red(k)}", f"rr{k>>2}")
        for i in range(3):
            a.wait(lg=f"rr{i}")
            for k in range(8): a(f"v_pk_add_f32 {vr(ACC + i*16 + 2*k, 2)}, {vr(ACC + i*16 + 2*k, 2)}, {vr(112 + i*16 + 2*k, 2)}")
        self.stamp()
        T = 160; R = 112
        GD = lambda d: 32 + d * 8
        for d in range(4):
            pass
        done = a.newlabel("L_own")
        for d in range(4):
            own = a.newlabel("L_d"); nxt = a.newlabel("L_n")
            a(f"s_cmp_eq_u32 s36, {d}\ns_cbranch_scc1 {own}")
            for k in range(6):
                src = ACC + (k >> 1) * 16 + d * 4 + (k & 1) * 2
                a(f"v_cvt_pk_bf16_f32 v{GD(d) + (k//3)*4 + k%3}, v{src}, v{src+1}")
            a(f"s_add_u32 s26, s50, {d*32768}")
            for q in range(2):
                a(f"buffer_store_dwordx4 {vr(GD(d) + q*4, 4)}, v{self.V_L16}, s[16:19], s26 offen offset:{q*1024} sc1")
            a(f"s_branch {nxt}")
            a.label(own)
            for e in range(12): a(f"v_mov_b32 v{T+e}, v{ACC + (e>>2)*16 + d*4 + (e&3)}")
            a.label(nxt)
        self.stamp()
        def poll(Rb):
            for j in range(1, 4):
                for q in range(2):
                    a(f"buffer_load_dwordx4 {vr(Rb + (j-1)*8 + q*4, 4)}, v{self.V_L16}, s[16:19], s{56+j} offen offset:{q*1024} sc1")
        def check(Rb):
            for g in range(6): a(f"v_xor_b32 v{140+g}, s62, v{Rb + g*4 + 3}")
            a(f"""
            v_or3_b32 v20, v140, v141, v142
            v_or3_b32 v21, v143, v144, v145
            v_or_b32 v20, v20, v21
            v_cmp_ne_u32 vcc, 0, v20
            """)
        lab = a.newlabel("L_pp"); ok = a.newlabel("L_pok"); okb = a.newlabel("L_pokb")
        R2 = 228
        if self.opt.get("poll2", 0):
            a("s_mov_b32 s63, 0")
            poll(R)
            a.label(lab)
            a(f"s_sleep {self.opt.get('psleep', 2)}")
            poll(R2)
            a("s_add_u32 s63, s63, 1\ns_waitcnt vmcnt(6)")
            check(R)
            a(f"s_cbranch_vccz {ok}\ns_sleep {self.opt.get('psleep', 2)}")
            poll(R)
            a("s_waitcnt vmcnt(6)")
            check(R2)
            a(f"s_cbranch_vccz {okb}\ns_cmp_lt_u32 s63, {SPIN_MAX}\ns_cbranch_scc1 {lab}")
            a.label(okb)
            a("s_waitcnt vmcnt(0)")
            a.label(ok)
        else:
            a("s_mov_b32 s63, 0")
            a.label(lab)
            if self.opt.get("psleep", 0): a(f"s_sleep {self.opt['psleep']}")
            poll(R)
            a("s_add_u32 s63, s63, 1\ns_waitcnt vmcnt(0)")
            check(R)
            a(f"s_cmp_ge_u32 s63, {SPIN_MAX}\ns_cbranch_scc1 {ok}\ns_cbranch_vccnz {lab}")
            a.label(ok)
        a.vmq = []
        self.stamp()
        for j in range(3):
            for k in range(6):
                src = R + j * 8 + (k // 3) * 4 + k % 3
                t = T + 12 + 2 * (k & 1)
                a(f"""v_lshlrev_b32 v{t}, 16, v{src}
                v_and_b32 v{t+1}, 0xffff0000, v{src}
                v_pk_add_f32 {vr(T+2*k, 2)}, {vr(T+2*k, 2)}, {vr(t, 2)}""")
        for k in range(6): a(f"v_cvt_pk_bf16_f32 v{T+48+k}, v{T+2*k}, v{T+2*k+1}")
        for i in range(3):
            for k in range(2):
                a(f"s_add_u32 s26, s27, {(i*32 + 2*k)*2048}")
                a.vm(f"buffer_store_short v{T+48+i*2+k}, v{self.V_OUT}, s[8:11], s26 offen", "st")
                a.vm(f"buffer_store_short_d16_hi v{T+48+i*2+k}, v{self.V_OUT}, s[8:11], s26 offen offset:2048", "st")

    def finish(self):
        a = self.a
        if self.stamps:
            a("s_waitcnt vmcnt(0)")
            self.final = True
            self.stamp()
            a(f"""
            s_lshl_b32 s50, s2, 2
            s_add_u32 s50, s50, s24
            s_lshl_b32 s50, s50, 7
            s_add_u32 s50, s50, {STAMP_OFF}
            v_mov_b32 v32, s50
            s_getreg_b32 s51, hwreg(HW_REG_XCC_ID)
            v_mov_b32 v33, s51
            global_store_dword v32, v33, s[48:49] offset:124
            """)
            a("s_sub_u32 s98, s100, s98\nv_mov_b32 v33, s98\nglobal_store_dword v32, v33, s[48:49] offset:120")
            for k in range(self.nst):
                a(f"v_mov_b32 v33, s{64+2*k}\nglobal_store_dword v32, v33, s[48:49] offset:{4*k}")
        a.label("L_end")
        a("s_endpgm")

    def build(self):
        c = self.a.c
        c("---- setup: ids, descriptors, per-lane addresses")
        self.setup()
        c("---- Q projection of both heads (x, wq by LDS-DMA; K of item 0 lands in registers), Q exchange through LDS")
        self.qphase()
        self.a(f"s_mov_b64 s[{self.s_chk}:{self.s_chk+1}], -1")
        c("---- item 0: S^T = K Q^T, P = 2^S, O^T = V^T P^T, row sums by MFMA, range check, publish O")
        self.item(0)
        c("---- item 1")
        self.item(1)
        c("---- output projection over the 8 heads of this workgroup's group, exchange of partial sums, store")
        self.phase3()
        self.finish()
        c("---- fallback: item 0 again with the row's true maximum subtracted")
        self.slow(0)
        c("---- fallback: item 1 again with the row's true maximum subtracted")
        self.slow(1)
        return self.a.text()

def gen(fname, stamps=False, kvpol=" nt", opt=None):
    opt = opt or {}
    k = KF(stamps, kvpol, opt)
    b1 = k.build()
    abl = opt.get("abl", "")
    if abl:
        out = []; main = True; started = False
        for l in b1.split("\n"):
            t = l.strip()
            if t.startswith("v_pk_mul_f32") or ("q" in abl and t.startswith("s_barrier")): started = True
            if t.startswith("s_getreg_b32"): started = False
            if "M" in abl and t.startswith("v_mfma"): continue
            if "M" in abl and t.startswith("s_cbranch_vccnz L_slow"): continue
            if started:
                if "m" in abl and (t.startswith("buffer_") or t.startswith("global_")): continue
                if "m" in abl and t.startswith("s_cmp_ge_u32 s63"): l = "    s_cmp_ge_u32 s63, 0"
                if "m" in abl and t.startswith("s_cbranch_vccnz L_slow"): continue
                if "e" in abl and t.startswith("v_exp_f32"): continue
                if "c" in abl and t.startswith("v_cvt_pk"): continue
                if "w" in abl and t.startswith("ds_write"): continue
                if "r" in abl and t.startswith("ds_read"): continue
                if "b" in abl and t.startswith("s_barrier"): continue
                if "s" in abl and (t.startswith("s_add_u32 m0") or t.startswith("s_add_u32 s26")): continue
            out.append(l)
        b1 = "\n".join(out)
    b1 = fix_hazards(b1, verbose=opt.get("v"))
    k1 = kernel_text(NAME + "_kernel", b1, 512, 102, 256)
    open(fname, "w").write(file_text([f"; @launch grid=(256,1,1) block=(256,1,1) lds={LDS_BYTES}"], [k1]))
    return k.nst
```

```python
import sys
sys.path.insert(0, "gen")
import g18, cfgcheck
from asmlib import NAME
OPT = {"wopf": 0, "local": 0, "nreg": 4, "wopf2": "p7", "chk0at": 6, "ospan": 6, "efirst": 8,
       "kpos": {0: {9: [0, 1, 2]}, 1: {15: [0, 1, 2]}, 2: {21: [0, 1, 2]}, 3: {27: [0, 1, 2]}}, "kspread": {3: (32, 2)},
       "sched": {11: ["E", "q0a"], 12: ["q1a", "q1b", "q2a"], 13: ["q2b", "q3a", "q3b"], 14: ["p0", "p1"], 15: ["p2", "p3"],
                 16: ["p4", "p5"], 17: ["p6", "p7"], 18: ["e"]}}
DOC = """; One launch, 256 workgroups of 4 waves, one per CU (160 KB LDS, 512 registers per lane); emitted by my generator gen/g18.py.
"""
out = f"cdna_kernels/{NAME}.s"
g18.gen(out, opt=dict(OPT))
t = open(out).read()
k = t.index("; @launch")
t = t[:k] + DOC + t[k:]
open(out, "w").write(t)
body = t[t.index("_kernel:\n") + 9:t.index(".section .rodata")]
print("cfg hazards:", cfgcheck.check(body))
```

```python
import sys
sys.path.insert(0, "gen")
import g18
T0 = {11: ["E","q0a"], 12: ["q1a","q1b","q2a"], 13: ["q2b","q3a","q3b"], 14: ["p0","p1"], 15: ["p2","p3"], 16: ["p4","p5"], 17: ["p6","p7"], 18: ["e"]}
VS = {4: ["X1","X2"], 5: ["Q0a","Q0b","Q1a"], 6: ["Q1b","Q2a","Q2b"]}
KS = "s_lshr_b32 s61, s34, 3\ns_lshl_b32 s61, s61, 1\ns_add_u32 s61, s61, s3"
def base(taus, ksp, vs=VS, **kw):
    o = {"wopf": 0, "local": 0, "wopf2": "p7", "chk0at": 6, "ospan": 6, "efirst": 8, "nreg": 4, "ksel": KS,
         "sched": {**T0, **vs}, "kpos": {p: {t: [0, 1, 2]} for p, t in enumerate(taus)}, "kspread": {3: ksp}}
    o.update(kw); return o
V = {
 "az1": base([-1, 2, 6, 10, 14, 18, 22, 26], (30, 1)),
 "az6": base([-1, 2, 5, 8, 11, 14, 17, 20], (28, 1)),
 "az7": base([-1, 2, 6, 10, 14, 18, 22, 26], (30, 1), {4: ["X1","X2","Q0a"], 5: ["Q0b","Q1a","Q1b"], 6: ["Q2a","Q2b","Q3a"]}),
 "az8": base([-1, 2, 5, 9, 13, 17, 20, 23], (26, 1)),
 "az9": base([-1, 2, 6, 10, 14, 18, 22, 26], (30, 1), {4: ["X1"], 5: ["X2","Q0a","Q0b"], 6: ["Q1a","Q1b","Q2a","Q2b"]}),
 "ba1": base([5, 8, 11, 14, 17, 20, 23, 26], (30, 1)),
 "ba2": base([3, 7, 10, 14, 17, 21, 24, 27], (31, 1)),
 "ba3": base([5, 8, 11, 14, 17, 20, 23, 26], (30, 1), {4: ["X1"], 5: ["X2","Q0a","Q0b"], 6: ["Q1a","Q1b","Q2a","Q2b"]}),
}
if __name__ == "__main__":
    for n in (sys.argv[1:] or V):
        g18.gen(f"dev/{n}.s", opt=dict(V[n]))
        g18.gen(f"dev/{n}_lt.s", stamps=True, opt=dict(V[n], lite=1))
```

```python
import sys
sys.path.insert(0, "gen")
import g18, cfgcheck
from asmlib import NAME
import mkv
OPT = mkv.V["az1"]
DOC = """; One launch, 256 workgroups of 4 waves, one per CU (160 KB LDS, 512 registers per lane); emitted by my generator gen/g18.py.
"""
out = f"cdna_kernels/{NAME}.s"
g18.gen(out, opt=dict(OPT))
t = open(out).read()
k = t.index("; @launch")
t = t[:k] + DOC + t[k:]
open(out, "w").write(t)
body = t[t.index("_kernel:\n") + 9:t.index(".section .rodata")]
print("cfg hazards:", cfgcheck.check(body))
```

```python
import sys, math, struct
sys.path.insert(0, "gen")
from asmlib import *

def f2u(x): return struct.unpack("<I", struct.pack("<f", x))[0]
CSCALE = f2u(math.log2(math.e) / math.sqrt(128.0))

XB = 65536
PB = 131072
STM = PB + 24576
LDS_BYTES = 163840
O_BYTES = 2 * 8 * 16 * 57344
FLAG_OFF = 16 << 20
PART_OFF = 32 << 20
PART_BYTES = 2 * 8 * 4 * 4 * 4 * 4 * 2 * 1024
JUNK = STM + 3072
STAMP_OFF = 64 << 20
SPIN_MAX = 1 << 16
MF32 = "v_mfma_f32_32x32x16_bf16"
MF16 = "v_mfma_f32_16x16x32_bf16"

def interleave(mains, fills, first=0):
    tot = sum(w for w, _ in fills)
    n = len(mains)
    fi = 0; done = 0.0
    def upto(target):
        nonlocal fi, done
        while fi < len(fills) and done + fills[fi][0] * 0.5 <= target:
            fills[fi][1](); done += fills[fi][0]; fi += 1
    first = min(first, tot)
    upto(first)
    for k, m in enumerate(mains):
        m()
        upto(first + (tot - first) * (k + 1) / n)
    while fi < len(fills):
        fills[fi][1](); fi += 1

def merge(*lists):
    lists = [l for l in lists if l]
    tots = [sum(w for w, _ in l) for l in lists]
    pos = [0] * len(lists); cum = [0.0] * len(lists)
    out = []
    while any(pos[i] < len(lists[i]) for i in range(len(lists))):
        best = min((i for i in range(len(lists)) if pos[i] < len(lists[i])),
                   key=lambda i: (cum[i] + lists[i][pos[i]][0] * 0.5) / tots[i])
        out.append(lists[best][pos[best]]); cum[best] += lists[best][pos[best]][0]; pos[best] += 1
    return out

class Sched:
    def __init__(self): self.mains = []; self.ops = []
    def main(self, fn): self.mains.append(fn); return len(self.mains) - 1
    def at(self, pos, fn): self.ops.append((pos, len(self.ops), fn))
    def spread(self, fills, lo, hi):
        tot = sum(w for w, _ in fills); c = 0.0
        for w, fn in fills:
            self.at(lo + (hi - lo) * (c + w * 0.5) / tot, fn); c += w
    def emit(self):
        ops = sorted(self.ops, key=lambda o: (o[0], o[1])); k = 0
        while k < len(ops) and ops[k][0] < 0: ops[k][2](); k += 1
        for i, m in enumerate(self.mains):
            m()
            while k < len(ops) and ops[k][0] < i + 1: ops[k][2](); k += 1
        while k < len(ops): ops[k][2](); k += 1

class KF:
    V_LIN = 1; V_KSRC = 2; V_VSRC = 6; V_L16 = 7; V_WSRC = 8; V_XSRC = 9; V_QW = 10; V_ONES = 8
    V_KA = 12; V_WA = 20; V_VA = 22; V_PW = 24; V_PR = 25; V_STW = 26; V_STR = 27; V_OST = 28; V_FL = 29; V_FR = 30
    V_F = 32; SB = [64, 112]; V_P = 160; QACC = 96
    A_O = 192; A_F = 240
    V_WO = 2; V_OUT = 12; V_TR = 13; V_PO = 17

    def __init__(self, stamps=False, kvpol=" nt", opt=None):
        self.a = Asm(); self.stamps = stamps; self.kvpol = kvpol; self.nst = 0
        self.opt = opt or {}
        self.final = False
        self.k_exact = set()
        self.nreg = self.opt.get('nreg', 4)
        self.in3 = False
        self.fl0_done = False
        self.fl0_checked = False
        self.o_issued = 0
        self.e_rest = []
    def tstamp(self):
        if self.opt.get("trace") and self.nst < 14: self.stamp(True)
    def stamp(self, t=False):
        if not self.stamps: return
        if self.opt.get("trace") and not t and self.nst > 0 and not self.final: return
        if self.opt.get("only3") and self.nst > 0 and not self.in3: return
        if self.opt.get("lite") and self.nst > 0 and not self.final: return
        a = self.a
        r = 64 + 2 * self.nst; self.nst += 1
        assert r + 1 <= 93
        if self.nst - 1 in self.opt.get("clk", ()):
            q = 98 + 2 * list(self.opt["clk"]).index(self.nst - 1)
            a(f"s_memtime s[{q}:{q+1}]")
        a(f"{'s_memtime' if self.opt.get('cyc') else 's_memrealtime'} s[{r}:{r+1}]\ns_waitcnt lgkmcnt(0)"); a.lgq = []
    def S(self, g, i): return self.SB[g & 1] + i * 16
    def P(self, g, i, s): return self.V_P + g * 24 + (i * 2 + s) * 4
    def slot(self, idx): return 0 if idx < self.nreg else (idx - self.nreg + 1) % 4
    def kland(self, g, i):
        return vr(192 + g * 32 + i * 4, 4) if g < 2 else ar(192 + (g - 2) * 32 + i * 4, 4)

    def lane_parts(self, t):
        self.a(f"""
        v_mbcnt_lo_u32_b32 v{t}, -1, 0
        v_mbcnt_hi_u32_b32 v{t}, -1, v{t}
        v_lshrrev_b32 v{t+1}, 4, v{t}
        v_and_b32 v{t+2}, 15, v{t}
        v_lshrrev_b32 v{t+3}, 5, v{t}
        v_and_b32 v{t+4}, 31, v{t}
        """)
    def ksrc_addrs(self, t):
        for ii in range(4):
            self.a(f"""
            v_add_u32 v{t+6}, {4*ii}, v{t+1}
            v_xor_b32 v{t+6}, v{t+2}, v{t+6}
            v_lshlrev_b32 v{t+6}, 4, v{t+6}
            v_lshl_add_u32 v{self.V_KSRC+ii}, v{t+1}, 8, v{t+6}
            """)
    def ka_addrs(self, t, base):
        for j in range(8):
            self.a(f"""
            v_add_u32 v{t+6}, {2*j}, v{t+3}
            v_xor_b32 v{t+6}, v{t+2}, v{t+6}
            v_lshlrev_b32 v{t+6}, 4, v{t+6}
            v_lshl_add_u32 v{t+6}, v{t+4}, 8, v{t+6}
            v_add_u32 v{self.V_KA+j}, {base}, v{t+6}
            """)
    def setup(self):
        a = self.a
        a("s_cmp_ge_u32 s2, 256\ns_cbranch_scc1 L_end")
        self.stamp()
        xh2 = self.opt.get('map', 'xh2') == 'xh2'
        a(f"""
        s_and_b32 s3, s2, 7
        s_lshr_b32 s34, s2, 3
        s_lshr_b32 s35, s3, 2
        s_mul_i32 s36, s35, 40
        s_add_u32 s38, s0, s36
        s_addc_u32 s39, s1, 0
        s_load_dwordx8 s[40:47], s[38:39], 0
        s_load_dwordx2 s[48:49], s[0:1], 96
        v_lshrrev_b32 v32, 6, v0
        s_and_b32 s36, s3, 3
        v_readfirstlane_b32 s24, v32
        s_lshl_b32 s36, s36, {1 if xh2 else 3}
        s_lshr_b32 s37, s34, 3
        s_lshl_b32 s37, s37, {3 if xh2 else 1}
        s_add_u32 s36, s36, s37
        s_and_b32 s37, s34, 7
        """)
        a(f"""
        s_lshl_b32 s25, s37, 5
        s_add_u32 s25, s25, s36
        s_lshl_b32 s50, s35, 8
        s_add_u32 s50, s50, s25
        s_mul_i32 s33, s50, 28672
        s_mul_i32 s50, s24, 6144
        s_add_u32 s33, s33, s50
        s_lshl_b32 s25, s25, 17
        s_lshl_b32 s50, s24, 13
        s_add_u32 s25, s25, s50
        s_lshl_b32 s28, s24, 15
        s_mul_i32 s30, s37, 98304
        s_lshl_b32 s31, s36, 8
        s_lshl_b32 s50, s24, 7
        s_add_u32 s31, s31, s50
        s_lshl_b32 s32, s24, 14
        s_lshl_b32 s27, s24, 10
        s_add_u32 s27, s27, {XB}
        s_lshr_b32 s50, s34, 3
        s_add_u32 s50, s50, s37
        """)
        for kc in range(4):
            if self.opt.get("rot", 1): a(f"s_add_u32 s51, s50, {kc}\ns_and_b32 s51, s51, 3")
            else: a(f"s_mov_b32 s51, {kc}")
            a(f"""s_lshl_b32 s{52+kc}, s51, 8
            s_add_u32 s{52+kc}, s{52+kc}, s30
            s_lshl_b32 s{56+kc}, s51, 20
            s_add_u32 s{56+kc}, s{56+kc}, s31""")
        a(self.opt.get("trot", "s_mov_b32 s50, 0"))
        for g in range(4):
            a(f"s_add_u32 s51, s50, {g}\ns_and_b32 s51, s51, 3\ns_lshl_b32 s51, s51, 15\ns_add_u32 s{94+g}, s25, s51")
        self.lane_parts(33)
        a(f"""
        v_lshlrev_b32 v{self.V_L16}, 4, v33
        s_lshl_b32 s50, s24, 2
        v_add_u32 v39, s50, v34
        v_xor_b32 v40, v35, v39
        v_lshlrev_b32 v40, 4, v40
        v_lshl_add_u32 v{self.V_XSRC}, v39, 10, v40
        v_lshrrev_b32 v39, 3, v33
        v_and_b32 v40, 7, v33
        v_and_b32 v41, 1, v34
        v_lshlrev_b32 v41, 2, v41
        v_xor_b32 v40, v40, v41
        v_lshlrev_b32 v40, 4, v40
        v_lshl_add_u32 v{self.V_WSRC}, v39, 13, v40
        """)
        self.ksrc_addrs(33)
        a("v_lshlrev_b32 v28, 7, v33")
        if self.opt.get("codepf", 0):
            a(f"""s_getpc_b64 s[100:101]
            s_lshl_b32 s50, s34, 11
            v_and_b32 v39, 0x780, v28
            v_add_u32 v39, s50, v39
            v_min_u32 v39, {self.opt["codepf"]}, v39
            global_load_dword v0, v39, s[100:101]""")
        a(f"""
        s_mov_b32 s6, 786432
        s_mov_b32 s7, 0x20000
        s_mov_b32 s10, 4194304
        s_mov_b32 s11, 0x20000
        s_mov_b32 s14, 33554432
        s_mov_b32 s15, 0x20000
        s_mov_b32 s18, 33554432
        s_mov_b32 s19, 0x20000
        s_mov_b32 s22, {O_BYTES}
        s_mov_b32 s23, 0x20000
        s_waitcnt lgkmcnt(0)
        s_mov_b64 s[4:5], s[40:41]
        s_mov_b64 s[8:9], s[46:47]
        s_mov_b64 s[12:13], s[42:43]
        s_mov_b64 s[16:17], s[44:45]
        s_mov_b64 s[20:21], s[48:49]
        s_load_dwordx2 s[40:41], s[38:39], 32
        s_load_dwordx4 s[44:47], s[0:1], 80
        """)
    def setup2(self):
        a = self.a
        a(f"""
        v_lshlrev_b32 v39, 2, v34
        v_xor_b32 v39, v35, v39
        v_lshlrev_b32 v39, 4, v39
        v_lshl_add_u32 v{self.V_VSRC}, v34, 8, v39
        v_add_u32 v{self.V_LIN}, s28, v{self.V_L16}
        """)
        self.ka_addrs(33, XB)
        a(f"""
        v_lshrrev_b32 v39, 2, v35
        v_lshl_add_u32 v40, v36, 3, v39
        v_lshlrev_b32 v40, 7, v40
        v_lshrrev_b32 v41, 3, v35
        v_lshl_add_u32 v40, v41, 6, v40
        v_and_b32 v41, 1, v34
        v_lshl_add_u32 v40, v41, 5, v40
        v_and_b32 v42, 3, v35
        v_lshl_add_u32 v40, v42, 3, v40
        v_add_u32 v{self.V_WA}, s32, v40
        v_xor_b32 v{self.V_WA+1}, 64, v{self.V_WA}
        v_lshl_add_u32 v40, v36, 2, v39
        v_lshlrev_b32 v40, 8, v40
        v_xor_b32 v43, s24, v39
        v_lshl_add_u32 v40, v43, 6, v40
        v_lshl_add_u32 v40, v41, 5, v40
        v_lshl_add_u32 v{self.V_VA}, v42, 3, v40
        v_add_u32 v{self.V_VA+1}, 0x10000, v{self.V_VA}
        s_mul_i32 s50, s24, 3072
        s_add_u32 s50, s50, {PB}
        v_add_u32 v{self.V_PW}, s50, v{self.V_L16}
        v_add_u32 v{self.V_PR}, {PB}, v{self.V_L16}
        v_lshlrev_b32 v40, 4, v37
        v_add_u32 v{self.V_STR}, {STM}, v40
        s_lshl_b32 s50, s24, 2
        v_add_u32 v{self.V_STW}, s50, v{self.V_STR}
        v_lshlrev_b32 v40, 4, v37
        v_lshl_add_u32 v40, v36, 3, v40
        s_mul_i32 s50, s24, 12288
        s_add_u32 s50, s50, {PB - 24576}
        s_add_u32 s51, s50, 8192
        s_add_u32 s26, s28, 65536
        s_cmp_lt_u32 s24, 2
        s_cselect_b32 s50, s28, s50
        s_cselect_b32 s51, s26, s51
        v_add_u32 v{self.V_QW}, s50, v40
        v_add_u32 v11, s51, v40
        v_add_u32 v31, 0x10000, v{self.V_L16}
        s_mov_b32 s42, {CSCALE:#x}
        s_mov_b32 s43, {CSCALE:#x}
        s_waitcnt lgkmcnt(0)
        """)
        lab = a.newlabel("L_nonce")
        a(f"""s_or_b32 s50, s2, s24
        s_cmp_lg_u32 s50, 0
        s_cbranch_scc1 {lab}
        s_memrealtime s[50:51]
        s_waitcnt lgkmcnt(0)
        s_or_b32 s50, s50, 1
        v_mov_b32 v39, 0
        v_mov_b32 v40, s50
        global_store_dword v39, v40, s[46:47] sc1""")
        a.label(lab)

    def ld_x(self, kc, m):
        a = self.a
        a.sset("m0", "s27", kc*24576 + m*4096); a(f"s_add_u32 s26, s{52+kc}, {m*16384}")
        a.vm(f"buffer_load_dwordx4 v{self.V_XSRC}, s[4:7], s26 offen lds", f"x{kc}")
    def ld_wq(self, ks, e):
        a = self.a
        a.sset("m0", "s32", (ks%8)*2048 + e*1024); a(f"s_add_u32 s26, s{56+(ks>>3)}, {((ks&7)*16 + e*8)*8192}")
        a.vm(f"buffer_load_dwordx4 v{self.V_WSRC}, s[8:11], s26 offen lds", f"wq{ks}")
    def ld_kreg(self, n):
        a = self.a
        g, i = n >> 3, n & 7
        a.sset("s60", f"s{94+g}", (i>>2)*4096)
        a.vm(f"buffer_load_dwordx4 {self.kland(g, i)}, v{self.V_KSRC+(i&3)}, s[12:15], s60 offen offset:{(i&3)*1024}{self.kvpol}", f"T{g}")
    def ld_piece(self, idx, i, slot=None):
        a = self.a
        item, kind, g = idx >> 3, (idx >> 2) & 1, idx & 3
        if slot is None: slot = self.slot(idx)
        srd = "s[16:19]" if kind else "s[12:15]"
        a.sset("m0", "s28", slot*8192 + (i>>2)*4096); a.sset("s29", f"s{94+g}", item*131072 + (i>>2)*4096)
        vo = self.V_VSRC if kind else self.V_KSRC + (i & 3)
        a.vm(f"buffer_load_dwordx4 v{vo}, {srd}, s29 offen offset:{(i&3)*1024}{self.kvpol} lds", f"T{idx}" if not (kind and i >= 4) else f"T{idx}b")
    def tile_fills(self, idx, lo=0, hi=8, w=24):
        if idx <= 15:
            return [(w, (lambda i=i: self.ld_piece(idx, i))) for i in range(lo, hi)]
        return [(w, (lambda i=i: self.ld_wo(idx - 16, i))) for i in range(lo, hi)]

    SCHED = {
        4: ["X1"], 5: ["X2", "Q0a", "Q0b"], 6: ["Q1a", "Q1b", "Q2a", "Q2b"], 7: ["P0", "P1"],
        8: ["P2", "P3"], 9: ["P4", "P5"], 10: ["P6", "P7"], 11: ["q0a", "q0b"],
        12: ["q1a", "q1b"], 13: ["q2a", "q2b"], 14: ["q3a", "q3b"], 15: ["p0", "p1"],
        16: ["p2", "p3"], 17: ["p4", "p5"], 18: ["p6", "p7"],
    }
    ORDER = (["X1", "X2"] + [f"Q{g}{h}" for g in range(4) for h in "ab"] + [f"P{k}" for k in range(8)] + ["E"] +
             [f"q{g}{h}" for g in range(4) for h in "ab"] + [f"p{k}" for k in range(8)] + ["e"])
    def earliest(self, idx):
        if idx < self.nreg + 3: return "X1"
        if idx == self.nreg + 3: return f"Q{self.nreg}a" if self.nreg < 4 else "P0"
        p = idx - 4
        if p < 3: return f"Q{p+1}a"
        if p == 3: return "P0"
        g = p & 3
        if p in (4, 5, 6): return f"P{2*g+2}"
        if p == 7: return "E"
        if p in (8, 9, 10): return f"q{g+1}a"
        if p == 11: return "p0"
        return f"p{2*g+2}"
    def seg_fills(self, seg):
        sch = dict(self.SCHED); sch.update(self.opt.get("sched", {}))
        out = []
        for idx in sorted(sch):
            segs = sch[idx]
            if seg in segs:
                assert self.ORDER.index(segs[0]) >= self.ORDER.index(self.earliest(idx)), (idx, segs)
                k = segs.index(seg); n = len(segs)
                out += self.tile_fills(idx, 8 * k // n, 8 * (k + 1) // n)
        return out

    def q_fills(self, tau):
        kskip = self.opt.get("kskip", 2)
        f = []
        if tau < 32: f += [(1, lambda e=e: self.ld_wq(tau, e)) for e in range(2)]
        c = (tau >> 3) + 1
        if c <= 3 and 1 <= (tau & 7) <= 6: f.append((1, lambda: self.ld_x(c, (tau & 7) - 1)))
        if self.opt.get("kpos"):
            if any(tau in d for d in self.opt["kpos"].values()): f.append((1, lambda: self.k_burst(tau)))
            for g, (t0, per) in self.opt.get("kspread", {}).items():
                for n in range(8):
                    if t0 + n // per == tau: f.append((1, lambda g=g, n=n: self.ld_kreg(g * 8 + n)))
                self.k_exact.add(g)
            return f
        if tau >= kskip and self.kplan < 32:
            n = self.kplan; self.kplan += 1
            f.append((1, lambda: self.ld_kreg(n)))
        return f
    def k_burst(self, tau):
        a = self.a
        ds = list(self.opt["kpos"].values())
        if all(d.get(tau) == ds[0].get(tau) for d in ds):
            for g in ds[0].get(tau, []):
                for i in range(8): self.ld_kreg(g * 8 + i)
                self.k_exact.add(g)
            return
        save = list(a.vmq)
        for ph, d in sorted(self.opt["kpos"].items()):
            if tau in d:
                lab = a.newlabel("L_kb")
                a(f"s_cmp_lg_u32 s61, {ph}\ns_cbranch_scc1 {lab}")
                for g in d[tau]:
                    for i in range(8): self.ld_kreg(g * 8 + i)
                a.label(lab)
        a.vmq = save
    def k_model(self):
        rest = [g for g in range(self.nreg) if g not in self.k_exact]
        if rest:
            q = self.a.vmq
            k = min([i for i, t in enumerate(q) if t[0] == "T"], default=len(q))
            assert all(min(self.k_exact, default=9) > g for g in rest)
            self.a.vmq = q[:k] + [f"T{g}" for g in rest for _ in range(8)] + q[k:]
    def q_read_ops(self, ks):
        a = self.a
        b = 32 + (ks & 1) * 20
        kc, jj = ks >> 3, ks & 7
        w = lambda t, u: (lambda: a.ds(f"ds_read_b64_tr_b16 {vr(b + t*4 + u*2, 2)}, v{self.V_WA+t} offset:{(ks%8)*2048 + u*512}", f"qw{ks}_{t}"))
        x = lambda i: (lambda: a.ds(f"ds_read_b128 {vr(b + 8 + i*4, 4)}, v{self.V_KA+jj} offset:{(kc&1)*24576 + i*8192}", f"qx{ks}_{i}"))
        return [w(0, 0), w(0, 1), x(0), x(1), x(2), w(1, 0), w(1, 1)]
    def qphase(self):
        a = self.a
        self.kplan = 0
        if self.opt.get("poison", "none") == "start":
            for _, f in self.poison_fills(76): f()
        if self.opt.get("kpos"):
            a(self.opt.get("ksel", "s_lshr_b32 s61, s34, 3\ns_add_u32 s61, s61, s3") + f"\ns_and_b32 s61, s61, {len(self.opt['kpos'])-1}")
            self.k_burst(-1)
        for m in range(6): self.ld_x(0, m)
        for _, f in self.q_fills(0): f()
        self.setup2()
        if self.opt.get("poison", "none") == "start2":
            for _, f in self.poison_fills(76): f()
        for tau in range(1, 7):
            for _, f in self.q_fills(tau): f()
        a.wait(vm=["x0", "wq0"])
        a("s_barrier")
        self.stamp()
        for f in self.q_read_ops(0): f()
        sc = Sched()
        for ks in range(32):
            b = 32 + (ks & 1) * 20
            base = len(sc.mains)
            for t in range(2):
                for i in range(3):
                    def mf(t=t, i=i, ks=ks, b=b):
                        a.wait(lg=[f"qw{ks}_{t}", f"qx{ks}_{i}"])
                        acc = vr(self.QACC + (t * 3 + i) * 16, 16)
                        a(f"{MF32} {acc}, {vr(b + t*4, 4)}, {vr(b + 8 + i*4, 4)}, {acc if ks else 0}")
                    sc.main(mf)
            if ks + 1 < 32:
                def pre(ks=ks):
                    a.wait(vm=[f"wq{ks+1}", f"x{(ks+1)>>3}"])
                    if (ks + 1) % 8 == 0: a("s_barrier")
                    if ks + 1 == 16:
                        for j in range(8): a(f"v_add_u32 v{self.V_KA+j}, 49152, v{self.V_KA+j}")
                sc.at(base + 0.0, pre)
                for k, f in enumerate(self.q_read_ops(ks + 1)): sc.at(base + [0.1, 0.2, 1.1, 2.1, 3.1, 4.1, 4.2][k], f)
            if self.opt.get("wopf") == f"k{ks}": sc.at(base + 4.6, self.wopf_early)
            if ks == 16:
                sc.at(base + 5.0, lambda: (a("v_mov_b32 v73, 0"), a.vm("global_load_dword v72, v73, s[46:47] sc1", "nonce")))
            for k, (_, f) in enumerate(self.q_fills(ks + 7)): sc.at(base + [1.5, 2.5, 3.5, 5.5, 0.5, 4.5, 5.6, 5.7][k], f)
        sc.emit()
        if self.opt.get("kpos"):
            self.k_burst(99)
        else:
            while self.kplan < 32:
                self.ld_kreg(self.kplan); self.kplan += 1
        a(f"s_sub_u32 s50, s28, {XB + 49152}")
        for j in range(8): a(f"v_add_u32 v{self.V_KA+j}, s50, v{self.V_KA+j}")
        a.wait(vm="nonce")
        a("v_readfirstlane_b32 s62, v72")
        if self.opt.get("kpos"): self.k_model()
        a("s_barrier")
        self.stamp()
        mains = []
        for t in range(2):
            for i in range(3):
                def cv(t=t, i=i):
                    tb = self.QACC + (t * 3 + i) * 16
                    for k in range(8): a(f"v_pk_mul_f32 {vr(tb+2*k, 2)}, {vr(tb+2*k, 2)}, s[42:43]")
                    for k in range(8): a(f"v_cvt_pk_bf16_f32 v{tb+k}, v{tb+2*k}, v{tb+2*k+1}")
                    for u in range(2):
                        for pc in range(2):
                            f = (t*2+u)*3+i
                            a.ds(f"ds_write_b64 v{self.V_QW if f < 8 else 11}, {vr(tb + u*4 + pc*2, 2)} offset:{(f%8)*1024 + pc*512}", "qw")
                mains.append(cv)
        interleave(mains, self.seg_fills("X1"), first=24)
        a.wait(lg="all")
        a("s_barrier")
        for r in range(4): a(f"v_mov_b32 v{self.V_ONES+r}, 0x3f803f80")
        xh2 = self.opt.get('map', 'xh2') == 'xh2'
        a(f"""
        s_mov_b32 s4, s40
        s_mov_b32 s5, s41
        s_mov_b32 s6, 4194304
        s_lshr_b32 s50, s37, 1
        s_and_b32 s51, s3, 3
        s_lshl_b32 s50, s50, {3 if xh2 else 1}
        s_lshl_b32 s51, s51, {1 if xh2 else 3}
        s_add_u32 s50, s50, s51
        s_and_b32 s51, s37, 1
        s_add_u32 s50, s50, s51
        s_lshl_b32 s32, s50, 17
        s_lshl_b32 s50, s24, 15
        s_add_u32 s32, s32, s50
        s_lshr_b32 s50, s34, 3
        s_lshl_b32 s50, s50, 8
        s_add_u32 s32, s32, s50
        """)
        mains = []
        late = []
        for hd in range(2):
            for sp in range(8):
                for i in range(3):
                    f = (sp & 3) * 3 + i; ws = 2 * hd + (sp >> 2)
                    dst = ar(hd * 96 + (sp * 3 + i) * 4, 4)
                    if hd == 0: t = f"ds_read_b128 {dst}, v{self.V_L16 if f < 8 else 31} offset:{ws*32768 + (f%8)*1024}"
                    else: t = f"ds_read_b128 {dst}, v{self.V_PR} offset:{(ws&1)*12288 + f*1024}"
                    if hd == 1: late.append(t)
                    else: mains.append(lambda t=t: a.ds(t, "qx"))
        self.q2late = late
        self.nonce_check()
        if self.opt.get("local", 1):
            a(f"""s_getreg_b32 s50, hwreg(HW_REG_XCC_ID)
            s_lshl_b32 s50, s50, 1
            s_and_b32 s50, s50, 30
            s_xor_b32 s36, s62, s50
            v_mov_b32 v20, s31
            v_mov_b32 v21, s36""")
            a.vm("global_store_dword v20, v21, s[48:49] offset:-4096 sc1", "idst")
            self.p3_flagaddr()
        interleave(mains, self.seg_fills("X2"))
        a.wait(lg="all")
        a("s_barrier")
        self.stamp()
    def wopf_early(self):
        a = self.a
        xh2 = self.opt.get('map', 'xh2') == 'xh2'
        a(f"""
        s_lshr_b32 s50, s37, 1
        s_and_b32 s51, s3, 3
        s_lshl_b32 s50, s50, {3 if xh2 else 1}
        s_lshl_b32 s51, s51, {1 if xh2 else 3}
        s_add_u32 s50, s50, s51
        s_and_b32 s51, s37, 1
        s_add_u32 s50, s50, s51
        s_lshl_b32 s51, s50, 17
        s_lshl_b32 s50, s24, 15
        s_add_u32 s51, s51, s50
        s_lshr_b32 s50, s34, 3
        s_lshl_b32 s50, s50, 8
        s_add_u32 s51, s51, s50
        v_lshrrev_b32 v74, 8, v28
        v_and_b32 v75, 0x80, v28
        v_lshl_add_u32 v74, v74, 10, v75
        v_add_u32 v74, s51, v74""")
        a.vm("global_load_dword v0, v74, s[40:41]", "pfw")
    def wopf2_fills(self):
        a = self.a
        def f():
            a(f"""s_and_b32 s50, s37, 1
            s_lshl_b32 s51, s50, 17
            s_lshl_b32 s50, s50, 14
            s_sub_u32 s26, s32, s51
            s_add_u32 s26, s26, s50
            s_add_u32 s26, s26, 131072
            v_and_b32 v20, 0xf00, v28
            v_and_b32 v21, 0x80, v28
            v_lshl_add_u32 v20, v20, 2, v21""")
            a.vm(f"buffer_load_dword v0, v20, s[4:7], s26 offen", "pfw")
        return [(24, f)]
    def wopf_fills(self):
        a = self.a
        def f():
            a(f"""v_lshrrev_b32 v20, 8, v28
            v_and_b32 v21, 0x80, v28
            v_lshl_add_u32 v20, v20, 10, v21""")
            a.vm(f"buffer_load_dword v0, v20, s[4:7], s32 offen", "pfw")
        return [(24, f)]
    def poison_fills(self, R=232):
        a = self.a
        def f(k):
            if k == 0:
                for r in range(4): a(f"v_mov_b32 v{R+r}, -1")
            a(f"s_add_u32 s26, s33, {24576 + k*1024}")
            a.vm(f"buffer_store_dwordx4 {vr(R, 4)}, v{self.V_L16}, s[20:23], s26 offen sc1", "poison")
        return [(24, lambda k=k: f(k)) for k in range(6)]
    def q2_fills(self):
        a = self.a
        return [(8, lambda t=t: a.ds(t, "q2")) for t in self.q2late]

    def k_write(self, g, i):
        self.a.ds(f"ds_write_b128 v{self.V_LIN}, {self.kland(g, i)} offset:{self.slot(g)*8192 + i*1024}", "kw")
    def k_read(self, idx, j):
        self.a.ds(f"ds_read_b128 {vr(self.V_F + j*4, 4)}, v{self.V_KA+j} offset:{self.slot(idx)*8192}", f"kf{idx}_{j}")
    def exp_fills(self, g, halves=(0, 1)):
        a = self.a
        f = []
        for s in halves:
            for i in range(3):
                b = self.S(g, i)
                for r in range(8*s, 8*s+8): f.append((8, lambda r=r, b=b: a(f"v_exp_f32 v{b+r}, v{b+r}")))
                for k in range(4):
                    f.append((4, lambda b=b, k=k, s=s, i=i: a(f"v_cvt_pk_bf16_f32 v{self.P(g, i, s)+k}, v{b+8*s+2*k}, v{b+8*s+2*k+1}")))
        return f
    def qk_tile(self, item, g):
        a = self.a
        idx = item * 8 + g
        if g == 0:
            a.wait(vm=f"T{idx}")
            self.tstamp()
            if item == 0:
                for i in range(8): self.k_write(0, i)
            for j in range(4): self.k_read(idx, j)
        sc = Sched()
        for j in range(8):
            for i in range(3):
                def m(j=j, i=i):
                    if i == 0: a.wait(lg=f"kf{idx}_{j}")
                    d = vr(self.S(g, i), 16)
                    a(f"{MF32} {d}, {vr(self.V_F + j*4, 4)}, {ar(item*96 + (j*3+i)*4, 4)}, {d if j else 0}")
                sc.main(m)
        for j in range(4, 8): sc.at(j - 4 + 0.0, lambda j=j: self.k_read(idx, j))
        def mid():
            if g < 3:
                a.wait(vm=f"T{idx+1}")
                self.tstamp()
            if item == 1 and g == self.opt.get("pub0at", 1): a.wait(vm="O0")
            if item == 1 and "O0" not in a.vmq and not self.fl0_done:
                self.fl0_done = True
                self.flag_store(0)
        staged = item == 0 and g + 1 < self.nreg
        sc.at(4.0 if staged else 12.0, mid)
        if g < 3:
            if staged:
                for i in range(8): sc.at(4.1 + i, lambda i=i: self.k_write(g + 1, i))
            for j in range(4): sc.at(13.0 + 3 * j, lambda j=j: self.k_read(idx + 1, j))
        ex = self.exp_fills(g - 1) if g > 0 else []
        other = []
        if item == 0 and g == 0: other = self.q2_fills()
        if g == 3: other = [(16, lambda i=i: self.p_write(0, i)) for i in range(3)]
        if item == 0 and g == 2 and self.opt.get("poison", "none") == "Q2": other = self.poison_fills()
        if item == 0 and g == 3 and self.opt.get("wopf", 1) == 1: other = other + self.wopf_fills()
        if item == 1 and g == 3: other = [(24, lambda: (self.p3_flagaddr(), self.flag_load(0)))] + other
        if item == 0 and g == 3 and self.opt.get("local", 1):
            other = other + [(24, lambda: a.vm(f"global_load_dword v{self.V_FR}, v{self.V_FL}, s[48:49] offset:-4096 sc1", "ids"))]
        seg = ("Q" if item == 0 else "q") + str(g)
        if self.opt.get("wopf") == seg: other = other + self.wopf_fills()
        if ex: sc.spread(ex, 3.0, 24)
        if other: sc.spread(other, 0.5, 24)
        for h, (lo, hi) in zip("ab", ((0.5, 12), (12.5, 24))):
            f = self.seg_fills(seg + h)
            if f: sc.spread(f, lo, hi)
        sc.emit()
        if item == 0 and g == 1: a("s_barrier")

    def p_write(self, hf, i):
        a = self.a
        g, s = hf >> 1, hf & 1
        if 1:
            a.ds(f"ds_write_b128 v{self.V_PW}, {vr(self.P(g, i, s), 4)} offset:{s*12288 + i*1024}", "pw")
    def pv_buf(self, n):
        return [("v", self.V_F), ("v", self.V_F + 16), ("a", self.A_F)][n % 3]
    def pv_read_ops(self, sl, s, wsrc, n):
        a = self.a
        f, b = self.pv_buf(n)
        ops = [(lambda u=u: a.ds(f"ds_read_b64_tr_b16 {vr(b + 2*u, 2, f)}, v{self.V_VA + (wsrc>>1)} offset:{(wsrc&1)*32768 + sl*8192 + (16*s + 8*u)*256}", f"pv{n}_0")) for u in range(2)]
        ops += [(lambda i=i: a.ds(f"ds_read_b128 {vr(b + 4 + 4*i, 4, f)}, v{self.V_PR} offset:{s*12288 + wsrc*3072 + i*1024}", f"pv{n}_{i}")) for i in range(3)]
        return ops
    def pv_reads(self, sl, s, wsrc, n):
        for f in self.pv_read_ops(sl, s, wsrc, n): f()
    ONES_AT = {0: (0, 1), 1: (2, 3), 2: (4,), 3: (5,), 4: (6,), 5: (7,)}
    RPOS = [0.1, 0.2, 0.3, 1.1, 2.1]
    def pv(self, item):
        a = self.a
        sc = Sched()
        gstart = {}; sub = {}
        for hf in range(8):
            sub[hf] = len(sc.mains)
            for wsrc in range(4):
                n = hf * 4 + wsrc
                if wsrc == (0 if hf == 0 else 1):
                    for k in self.ONES_AT.get(hf, ()):
                        for i in range(3):
                            def o(k=k, i=i):
                                d = vr(self.SB[0] + i * 16, 16)
                                a(f"{MF32} {d}, {vr(self.V_ONES, 4)}, {vr(self.P(k >> 1, i, k & 1), 4)}, {d if k else 0}")
                            sc.main(o)
                gstart[n] = len(sc.mains)
                for i in range(3):
                    def m(n=n, i=i):
                        a.wait(lg=[f"pv{n}_0", f"pv{n}_{i}"])
                        f, b = self.pv_buf(n)
                        d = ar(self.A_O + i * 16, 16)
                        a(f"{MF32} {d}, {vr(b, 4, f)}, {vr(b + 4 + 4*i, 4, f)}, {d if n else 0}")
                    sc.main(m)
        sub[8] = len(sc.mains)
        bar = {}
        for hf in range(8):
            g, s = hf >> 1, hf & 1
            idx = item * 8 + 4 + g
            def sync(hf=hf, s=s, idx=idx):
                if self.opt.get("halfv", 1): a.wait(vm=(f"T{idx}" if s == 0 else f"T{idx}b"), lg="all")
                else: a.wait(vm=([f"T{idx}", f"T{idx}b"] if s == 0 else None), lg="all")
                if s == 0: self.tstamp()
                a("s_barrier")
                if item == 1 and hf == self.opt.get("chk0at", 1): self.flag_check(0)
            bar[hf] = -1.0 if hf == 0 else gstart[4 * hf - 2] - 0.05
            sc.at(bar[hf], sync)
            for wsrc in range(4):
                n = hf * 4 + wsrc
                ops = self.pv_read_ops(self.slot(idx), s, wsrc, n)
                for k, f in enumerate(ops):
                    if n < 2: sc.at(-0.9 + 0.1 * n + 0.01 * k, f)
                    elif wsrc == 0: sc.at(gstart[n - 2] + [-0.04, -0.03, -0.02, 0.1, 1.1][k], f)
                    else: sc.at(gstart[n - 2] + self.RPOS[k], f)
        bar[8] = sub[8]
        if self.opt.get("earlysum", 1):
            sc.at(bar[7] + 3.3, lambda: self.sum_reads())
            sc.at(bar[7] + 9.3, lambda: self.sum_eval())
        for hf in range(8):
            lo, hi = max(bar[hf], 0) + 0.5, bar[hf + 1] - 0.1
            if hf + 1 < 8:
                for i in range(3): sc.at(lo + 1.0 + 2 * i, lambda hf=hf, i=i: self.p_write(hf + 1, i))
            ld = self.seg_fills(("P" if item == 0 else "p") + str(hf))
            ex = []
            if hf < 4:
                e = self.exp_fills(3, (hf >> 1,))
                ex = e[:len(e)//2] if hf % 2 == 0 else e[len(e)//2:]
            other = []
            if hf == 6:
                sc.at(hi - 4, lambda: [a.ds(f"ds_write_b32 v{self.V_STW}, v{self.SB[0] + i*16} offset:{1536 + i*512}", "st") for i in range(3)])
            if item == 1:
                if self.opt.get("wopf") == f"p{hf}": ld = ld + self.wopf_fills()
                c0 = self.opt.get("chk0at", 1)
                if hf >= c0:
                    self.fl0_checked = True
                    nseg = self.opt.get("ospan", 4)
                    upto = min(18, (18 * (hf - c0 + 1) + nseg - 1) // nseg)
                    other += [(24, lambda n=n: self.ld_o(1 + n // 6, n % 6)) for n in range(self.o_issued, upto)]
                    self.o_issued = upto
                if self.opt.get("wopf2") == f"p{hf}": other += self.wopf2_fills()
            for f in (ld, ex, other):
                if f: sc.spread(f, lo, hi)
        sc.emit()

    def sum_reads(self):
        T = self.SB[1]
        for i in range(3): self.a.ds(f"ds_read_b128 {vr(T + i*4, 4)}, v{self.V_STR} offset:{1536 + i*512}", f"sm{i}")
    def sum_eval(self):
        a = self.a
        T = self.SB[1]
        a(f"s_mov_b32 s50, {f2u(2.0 ** self.opt.get('lo', -30)):#x}\ns_mov_b32 s51, {f2u(2.0 ** 30):#x}")
        for i in range(3):
            a.wait(lg=f"sm{i}")
            b = T + i * 4
            a(f"v_add_f32 v{b}, v{b}, v{b+1}\nv_add_f32 v{b+2}, v{b+2}, v{b+3}\nv_add_f32 v{b}, v{b}, v{b+2}")
        a(f"""
        v_min3_f32 v{T+1}, v{T}, v{T+4}, v{T+8}
        v_max3_f32 v{T+2}, v{T}, v{T+4}, v{T+8}
        v_cmp_u_f32 vcc, v{T}, v{T+4}
        v_cmp_u_f32 s[0:1], v{T+8}, v{T+8}
        s_or_b64 s[0:1], vcc, s[0:1]
        v_cmp_nle_f32 vcc, s50, v{T+1}
        s_or_b64 s[0:1], vcc, s[0:1]
        v_cmp_nge_f32 vcc, s51, v{T+2}
        s_or_b64 s[0:1], vcc, s[0:1]
        """)
        for i in range(3): a(f"v_rcp_f32 v{T+12+2*i}, v{T+i*4}\nv_rcp_f32 v{T+13+2*i}, v{T+i*4}")
    def epilogue(self, item):
        a = self.a
        T = self.SB[1]
        if not self.opt.get("earlysum", 1):
            a.label(f"L_epi{item}")
            self.sum_reads(); self.sum_eval()
        a(f"""
        s_mov_b64 vcc, s[0:1]
        s_and_b64 vcc, vcc, s[{self.s_chk}:{self.s_chk+1}]
        s_cbranch_vccnz L_slow{item}
        """)
        if self.opt.get("earlysum", 1): a.label(f"L_epi{item}")
        a(f"s_mov_b64 s[{self.s_chk}:{self.s_chk+1}], -1")
        if item == 0 and self.opt.get("local", 1):
            a.wait(vm="ids")
            a(f"""v_cmp_ne_u32 vcc, s36, v{self.V_FR}
            s_cmp_eq_u64 vcc, 0
            s_cselect_b32 s61, {self.opt.get('force', 1)}, 0""")
        ef = self.seg_fills("E" if item == 0 else "e")
        if item == 1 and self.o_issued < 18:
            if not self.fl0_checked: self.flag_check(0)
            ol = [(24, lambda n=n: self.ld_o(1 + n // 6, n % 6)) for n in range(self.o_issued, 18)]
            k = self.opt.get("efirst", 0)
            ef = ef[:k] + merge(ol, ef[k:])
        for i in range(3):
            tb = self.V_P + i * 24
            if item == 0 or not self.opt.get("elast", 1):
                for _, f in ef[len(ef)*i//3:len(ef)*(i+1)//3]: f()
            else:
                n1 = self.opt.get("efirst", 0)
                for _, f in ef[n1*i//3:n1*(i+1)//3]: f()
            for r in range(16): a(f"v_accvgpr_read_b32 v{tb+r}, a{self.A_O + i*16 + r}")
            for r in range(8): a(f"v_pk_mul_f32 {vr(tb+2*r, 2)}, {vr(tb+2*r, 2)}, {vr(T+12+2*i, 2)}")
            if item == 0:
                for k in range(8): a(f"v_cvt_pk_bf16_f32 v{tb+16+k}, v{tb+2*k}, v{tb+2*k+1}")
                for k in range(8): a(f"v_accvgpr_write_b32 a{((k>>2)*3 + i)*4 + (k&3)}, v{tb+16+k}")
            else:
                for k in range(8):
                    dst = tb + 16 + k if k % 4 < 3 else 232 + (k >> 2) * 4 + i
                    a(f"v_cvt_pk_bf16_f32 v{dst}, v{tb+2*k}, v{tb+2*k+1}")
                a(f"v_mov_b32 v{tb+19}, s62\nv_mov_b32 v{tb+23}, s62")
                if i == 0:
                    a(f"v_mov_b32 v235, s62\nv_mov_b32 v239, s62")
                    self.o_write(0)
        regs = [self.V_P + (f % 3) * 24 + 16 + (f // 3) * 4 for f in range(6)] + ([232, 236] if item else [])
        a(f"s_add_u32 s26, s33, 0" if item == 0 else f"s_lshl_b32 s26, s24, 11\ns_add_u32 s26, s26, s33\ns_add_u32 s26, s26, 24576")
        a("s_add_u32 s50, s26, 4096")
        def stores(pol):
            for f, r in enumerate(regs):
                a(f"buffer_store_dwordx4 {vr(r, 4)}, v{self.V_L16}, s[20:23], {'s26' if f < 4 else 's50'} offen offset:{(f%4)*1024}{pol}")
        if self.opt.get("local", 1):
            far = a.newlabel("L_far"); done = a.newlabel("L_std")
            a(f"s_cmp_eq_u32 s61, 0\ns_cbranch_scc1 {far}")
            stores(self.opt.get("lspol", ""))
            a(f"s_branch {done}")
            a.label(far)
            stores(" sc1")
            a.label(done)
        else:
            stores(" sc1")
        a.vmq += [f"O{item}"] * len(regs)
        if item == 1:
            a.nop(2)
            for f in range(6): a(f"v_mov_b32 v{regs[f]+3}, v{232 + (f//3)*4 + f%3}")
            if self.opt.get("elast", 1): self.e_rest = ef[self.opt.get("efirst", 0):]
    s_chk = 38

    def item(self, item):
        for g in range(4): self.qk_tile(item, g)
        if item == 1:
            if not self.fl0_done:
                self.a.wait(vm="O0"); self.flag_store(0); self.fl0_done = True
            self.p3_setup()
        self.stamp()
        self.pv(item)
        if item == 1: self.in3 = True
        self.stamp()
        self.a("s_barrier")
        self.epilogue(item)
        self.stamp()

    def slow(self, item):
        a = self.a
        a.vmq = []; a.lgq = []
        S = lambda g, i: 64 + (g * 3 + i) * 16
        F = self.V_F; M = [29, 30, 31]; MC = [20, 21, 1]; L = [60, 61, 62]
        a.label(f"L_slow{item}")
        a("s_waitcnt vmcnt(0) lgkmcnt(0)\ns_barrier")
        a(f"s_mov_b64 s[{self.s_chk}:{self.s_chk+1}], 0")
        if item == 1:
            self.lane_parts(33); self.ksrc_addrs(33); self.ka_addrs(33, "s28")
        for g in range(4):
            for i in range(8): self.ld_piece(item * 8 + g, i, slot=g)
        a.wait(vm="all")
        for g in range(4):
            for j in range(8): a.ds(f"ds_read_b128 {vr(F + j*4, 4)}, v{self.V_KA+j} offset:{g*8192}", "kf")
            a.wait(lg="all")
            for j in range(8):
                for i in range(3):
                    d = vr(S(g, i), 16)
                    a(f"{MF32} {d}, {vr(F + j*4, 4)}, {ar(item*96 + (j*3+i)*4, 4)}, {d if j else 0}")
        for g in range(4):
            for i in range(8): self.ld_piece(item * 8 + 4 + g, i, slot=g)
        for i in range(3):
            a(f"v_mov_b32 v{M[i]}, v{S(0, i)}")
            for g in range(4):
                for k in range(8): a(f"v_max3_f32 v{M[i]}, v{M[i]}, v{S(g, i)+2*k}, v{S(g, i)+2*k+1}")
        for i in range(3): a(f"v_mov_b32 v{F+i}, v{M[i]}")
        for i in range(3): a(f"v_permlane32_swap_b32 v{M[i]}, v{F+i}")
        for i in range(3): a(f"v_max_f32 v{M[i]}, v{M[i]}, v{F+i}")
        for i in range(3): a.ds(f"ds_write_b32 v{self.V_STW}, v{M[i]} offset:{i*512}", "st")
        a.wait(lg="all")
        a("s_barrier")
        for i in range(3): a.ds(f"ds_read_b128 {vr(F + 4 + i*4, 4)}, v{self.V_STR} offset:{i*512}", "sm")
        a.wait(lg="all")
        for i in range(3):
            b = F + 4 + i * 4
            a(f"v_max3_f32 v{b}, v{b}, v{b+1}, v{b+2}\nv_max_f32 v{MC[i]}, v{b}, v{b+3}\nv_mov_b32 v{L[i]}, 0")
        for g in range(4):
            for i in range(3):
                s = S(g, i)
                for r in range(16): a(f"v_sub_f32 v{s+r}, v{s+r}, v{MC[i]}")
                for r in range(16): a(f"v_exp_f32 v{s+r}, v{s+r}")
                for k in range(8):
                    a(f"v_add_f32 v{L[i]}, v{L[i]}, v{s+2*k}\nv_add_f32 v{L[i]}, v{L[i]}, v{s+2*k+1}")
                    a(f"v_cvt_pk_bf16_f32 v{s+k}, v{s+2*k}, v{s+2*k+1}")
        for i in range(3): a(f"v_mov_b32 v{F+i}, v{L[i]}")
        for i in range(3): a(f"v_permlane32_swap_b32 v{L[i]}, v{F+i}")
        for i in range(3): a(f"v_add_f32 v{L[i]}, v{L[i]}, v{F+i}")
        for i in range(3): a.ds(f"ds_write_b32 v{self.V_STW}, v{L[i]} offset:{1536 + i*512}", "st")
        a.wait(vm="all")
        for g in range(4):
            for s in range(2):
                for i in range(3):
                    a.ds(f"ds_write_b128 v{self.V_PW}, {vr(S(g, i) + 4*s, 4)} offset:{s*12288 + i*1024}", "pw")
            a.wait(lg="all")
            a("s_barrier")
            for s in range(2):
                for wsrc in range(4):
                    self.pv_reads(g, s, wsrc, 0)
                    a.wait(lg="all")
                    for i in range(3):
                        d = ar(self.A_O + i * 16, 16)
                        a(f"{MF32} {d}, {vr(F, 4)}, {vr(F + 4 + 4*i, 4)}, {d if (g or s or wsrc) else 0}")
            a("s_barrier")
        if item == 1: self.p3_addrs(48)
        for idx in range(item * 8 + 8, item * 8 + 11):
            for _, f in self.tile_fills(idx): f()
        if self.opt.get("earlysum", 1):
            self.sum_reads(); self.sum_eval()
        if item == 0: a(f"v_not_b32 v{self.V_FR}, s36")
        a("s_waitcnt vmcnt(0)")
        a.nop(16)
        a(f"s_branch L_epi{item}")

    def p3_flagaddr(self):
        self.a(f"""
        s_and_b32 s30, s31, {(1 << 32) - 16:#x}
        v_and_b32 v{self.V_FL}, 0x30, v{self.V_L16}
        v_lshrrev_b32 v{self.V_FL}, 2, v{self.V_FL}
        v_add_u32 v{self.V_FL}, s30, v{self.V_FL}
        """)
    def p3_setup(self):
        a = self.a
        xh2 = self.opt.get('map', 'xh2') == 'xh2'
        a(f"""
        s_lshr_b32 s50, s34, 3
        s_and_b32 s51, s3, 3
        s_lshl_b32 s60, s35, 3
        s_add_u32 s60, s60, s37
        """)
        a(f"""
        s_lshl_b32 s42, s60, 2
        s_add_u32 s42, s42, s50
        s_mul_i32 s42, s42, {16*8192}
        s_lshl_b32 s63, s24, 11
        s_add_u32 s42, s42, s63
        """)
        a(f"""
        s_mul_i32 s43, s37, 43
        s_lshr_b32 s43, s43, 7
        s_mul_i32 s43, s43, 3
        s_sub_u32 s43, s37, s43
        """)
        for j in range(4):
            if j == 0: a("s_mov_b32 s26, s50")
            else:
                if self.opt.get("rot3", 1):
                    a(f"""s_add_u32 s26, s43, {j-1}
                    s_cmp_ge_u32 s26, 3
                    s_cselect_b32 s63, 3, 0
                    s_sub_u32 s26, s26, s63
                    s_add_u32 s26, s26, 1""")
                else: a(f"s_mov_b32 s26, {j}")
                a("s_add_u32 s26, s26, s50\ns_and_b32 s26, s26, 3")
            if xh2: a("s_lshl_b32 s26, s26, 3\ns_lshl_b32 s63, s51, 1\ns_add_u32 s26, s26, s63")
            else: a("s_lshl_b32 s26, s26, 1\ns_lshl_b32 s63, s51, 3\ns_add_u32 s26, s26, s63")
            a(f"""s_lshl_b32 s{56+j}, s26, 17
            s_lshl_b32 s63, s24, 15
            s_add_u32 s{56+j}, s{56+j}, s63
            s_lshl_b32 s63, s50, 8
            s_add_u32 s{56+j}, s{56+j}, s63
            s_lshl_b32 s63, s60, 5
            s_add_u32 s26, s26, s63
            s_mul_i32 s{52+j}, s26, 28672
            s_mul_i32 s63, s24, 6144
            s_add_u32 s{52+j}, s{52+j}, s63""")
        a(f"""
        s_mul_i32 s27, s37, 96
        s_lshl_b32 s63, s51, 3
        s_add_u32 s27, s27, s63
        s_lshl_b32 s27, s27, 11
        s_lshl_b32 s63, s35, 10
        s_add_u32 s27, s27, s63
        s_lshl_b32 s63, s50, 8
        s_add_u32 s27, s27, s63
        s_and_b32 s63, s24, 1
        s_lshl_b32 s63, s63, 7
        s_add_u32 s27, s27, s63
        s_lshr_b32 s63, s24, 1
        s_lshl_b32 s63, s63, 6
        s_add_u32 s27, s27, s63
        s_mov_b32 s8, s44
        s_mov_b32 s9, s45
        s_mov_b32 s10, 1572864
        s_mov_b32 s36, s51
        """)
        self.p3_addrs(48)
    def p3_addrs(self, t):
        a = self.a
        self.lane_parts(t)
        a(f"""
        v_lshlrev_b32 v{t+5}, 2, v{t+1}
        v_xor_b32 v{t+5}, v{t+2}, v{t+5}
        v_lshlrev_b32 v{t+5}, 4, v{t+5}
        v_lshl_add_u32 v{self.V_WO}, v{t+1}, 10, v{t+5}
        v_add_u32 v{self.V_WO+1}, 3072, v{self.V_WO}
        v_add_u32 v{self.V_WO+2}, 6144, v{self.V_WO}
        v_add_u32 v{self.V_WO+3}, 9216, v{self.V_WO}
        v_lshlrev_b32 v{t+5}, 1, v{t+4}
        v_lshl_add_u32 v{self.V_OUT}, v{t+3}, 13, v{t+5}
        v_add_u32 v{self.V_LIN}, s28, v{self.V_L16}
        v_add_u32 v31, 0x10000, v{self.V_L16}
        s_lshl_b32 s26, s24, 11
        v_add_u32 v19, s26, v{self.V_L16}
        s_xor_b32 s50, s24, 1
        s_mul_i32 s26, s50, 3072
        v_add_u32 v{self.V_PO}, s26, v{self.V_PR}
        s_lshl_b32 s26, s50, 15
        v_add_u32 v{self.V_PO+1}, s26, v{self.V_L16}
        s_xor_b32 s26, s28, 0x10000
        v_add_u32 v31, s26, v{self.V_L16}
        """)
        for src in range(2):
            for ntl in range(2):
                a(f"""s_and_b32 s26, s24, 1
                s_lshl_b32 s26, s26, 1
                s_lshr_b32 s50, s24, 1
                s_xor_b32 s50, s50, {ntl}
                s_add_u32 s26, s26, s50
                s_xor_b32 s26, s26, s24
                s_lshl_b32 s26, s26, 6
                v_xor_b32 v{t+5}, s26, v{self.V_VA}
                s_xor_b32 s26, s28, {src << 15}
                v_add_u32 v{self.V_TR + src*2 + ntl}, s26, v{t+5}""")
    def nonce_check(self):
        a = self.a
        lab = a.newlabel("L_np"); ok = a.newlabel("L_nok")
        a(f"""
        s_mov_b32 s63, 0
        s_cmp_lg_u32 s62, 0
        s_cbranch_scc1 {ok}
        """)
        a.label(lab)
        a(f"""
        v_mov_b32 v20, 0
        global_load_dword v21, v20, s[46:47] sc1
        s_waitcnt vmcnt(0)
        v_readfirstlane_b32 s62, v21
        s_add_u32 s63, s63, 1
        s_cmp_ge_u32 s63, {SPIN_MAX}
        s_cbranch_scc1 {ok}
        s_cmp_eq_u32 s62, 0
        s_cbranch_scc1 {lab}
        """)
        a.label(ok)
        a(f"""
        s_lshl_b32 s31, s35, 3
        s_add_u32 s31, s31, s37
        s_lshl_b32 s31, s31, 2
        s_and_b32 s60, s3, 3
        s_add_u32 s31, s31, s60
        s_lshl_b32 s31, s31, 2
        s_add_u32 s31, s31, s24
        s_lshl_b32 s31, s31, 2
        s_lshr_b32 s60, s34, 3
        s_add_u32 s31, s31, s60
        s_lshl_b32 s31, s31, 2
        s_add_u32 s31, s31, {FLAG_OFF}
        """)
    def flag_store(self, rnd):
        a = self.a
        assert f"O{rnd}" not in a.vmq
        a(f"s_add_u32 s26, s31, {rnd*4096}\nv_mov_b32 v20, s26\nv_mov_b32 v21, s62")
        a.vm(f"global_store_dword v20, v21, s[48:49] sc1", f"fs{rnd}")
    def fl_ins(self, rnd):
        if rnd == 2: return f"global_load_dword v{self.V_FR}, v{self.V_FL2}, s[48:49] sc1"
        return f"global_load_dword v{self.V_FR}, v{self.V_FL}, s[{[48, 42][rnd]}:{[49, 43][rnd]}] sc1"
    def flag_load(self, rnd):
        self.a.vm(self.fl_ins(rnd), f"fl{rnd}")
    def flag_check(self, rnd):
        a = self.a
        a.wait(vm=f"fl{rnd}")
        lab = a.newlabel("L_poll"); ok = a.newlabel("L_pok")
        a(f"""
        v_cmp_ne_u32 vcc, s62, v{self.V_FR}
        s_mov_b32 s63, 0
        s_cbranch_vccz {ok}
        """)
        a.label(lab)
        a(f"""
        {self.fl_ins(rnd)}
        s_add_u32 s63, s63, 1
        s_waitcnt vmcnt(0)
        v_cmp_ne_u32 vcc, s62, v{self.V_FR}
        s_cmp_ge_u32 s63, {SPIN_MAX}
        s_cbranch_scc1 {ok}
        s_cbranch_vccnz {lab}
        """)
        a.label(ok)
    def p3_buf(self, n):
        return ("a", 96 + (n % (self.opt.get("p3d", 2) + 1)) * 16)
    def wo_slot(self, h): return self.slot(12 + h % 3)
    def ld_wo(self, h, i):
        a = self.a
        a.sset("m0", "s28", self.wo_slot(h)*8192 + (i>>2)*4096); a.sset("s43", f"s{56 + (h&3)}", (h>>2)*131072 + (i>>2)*16384)
        a.vm(f"buffer_load_dwordx4 v{self.V_WO+(i&3)}, s[4:7], s43 offen offset:{(i&3)*1024}{self.opt.get('wopol','')} lds", f"w{h}")
    def o_reg(self, h, f):
        if h == 4: return vr(self.V_P + (f % 3) * 24 + 16 + (f // 3) * 4, 4)
        if h < 4: return ar(h * 24 + f * 4, 4)
        return vr(self.o2base((h - 5) * 8 + f), 4)
    def o2base(self, q):
        return ([32 + 4*k for k in range(8)] + [112 + 4*k for k in range(16)])[q]
    def ld_o(self, h, f):
        a = self.a
        if h < 5:
            a.sset("s30", f"s{52 + (h&3)}", (f//4)*4096)
            a.vm(f"buffer_load_dwordx4 {self.o_reg(h, f)}, v{self.V_L16}, s[20:23], s30 offen offset:{(f%4)*1024}{self.opt.get('olpol', ' sc1')}", f"o{h}")
        else:
            a.sset("s30", f"s{52 + (h&3)}", 24576 + (f//4)*4096)
            a.vm(f"buffer_load_dwordx4 {vr(self.o2base((h-5)*8 + f), 4)}, v19, s[20:23], s30 offen offset:{(f%4)*1024}{self.opt.get('olpol', ' sc1')}", f"o{h}")
    def o_check(self, h):
        a = self.a
        a.wait(vm=f"o{h}")
        if h >= 5:
            r = [self.o2base((h - 5) * 8 + f) for f in range(8)]
            lab = a.newlabel("L_op"); ok = a.newlabel("L_ook"); chk = a.newlabel("L_ochk")
            a(f"s_mov_b32 s63, 0\ns_branch {chk}")
            a.label(lab)
            save = list(a.vmq)
            for f in range(8): self.ld_o(h, f)
            a.vmq = save
            a("s_waitcnt vmcnt(0)")
            a.label(chk)
            a(f"""
            v_min3_u32 v20, v{r[0]+3}, v{r[1]+3}, v{r[2]+3}
            v_max3_u32 v21, v{r[0]+3}, v{r[1]+3}, v{r[2]+3}
            v_min3_u32 v20, v20, v{r[3]+3}, v{r[4]+3}
            v_max3_u32 v21, v21, v{r[3]+3}, v{r[4]+3}
            v_min3_u32 v20, v20, v{r[5]+3}, v{r[6]+3}
            v_max3_u32 v21, v21, v{r[5]+3}, v{r[6]+3}
            v_min_u32 v20, v20, v{r[7]+3}
            v_max_u32 v21, v21, v{r[7]+3}
            v_xor_b32 v20, s62, v20
            v_xor_b32 v21, s62, v21
            v_or_b32 v20, v20, v21
            s_add_u32 s63, s63, 1
            v_cmp_ne_u32 vcc, 0, v20
            s_cmp_ge_u32 s63, {SPIN_MAX}
            s_cbranch_scc1 {ok}
            s_cbranch_vccnz {lab}
            """)
            a.label(ok)
            for f in range(6): a(f"v_mov_b32 v{r[f]+3}, v{r[6 + f//3] + f%3}")
    def o_write1(self, h, f):
        a = self.a
        if h % 2 == 0: a.ds(f"ds_write_b128 v{self.V_PW}, {self.o_reg(h, f)} offset:{(f//3)*12288 + (f%3)*1024}", "ow")
        else: a.ds(f"ds_write_b128 v{self.V_LIN}, {self.o_reg(h, f)} offset:{self.slot(15)*8192 + f*1024}", "ow")
    def o_write(self, h):
        self.o_check(h)
        for f in range(6): self.o_write1(h, f)
    ACC3 = [[64, 80, 96], [184, 208, 240]]
    def phase3(self):
        a = self.a
        ACC = 64
        D = self.opt.get("p3d", 3)
        o2at = self.opt.get("o2at", 3)
        sc = Sched()
        def groups(h):
            g = [(src, s, ntl) for src in range(2) for s in range(2) for ntl in range(2)]
            return g if h < 7 else sorted(g, key=lambda x: -x[2])
        first = {0: True, 1: True}
        for h in range(8):
            for g, (src, s, ntl) in enumerate(groups(h)):
                n = h * 8 + g
                for i in range(3):
                    def m(n=n, i=i, h=h, src=src, s=s, ntl=ntl, z=first[ntl]):
                        a.wait(lg=[f"r{n}"] + ([f"po{h}_{s*3+i}"] if src else []))
                        d = vr(self.ACC3[ntl][i], 16)
                        A = ar(96 + (h & 1) * 24 + (s * 3 + i) * 4, 4) if src else self.o_reg(h, s * 3 + i)
                        a(f"{MF32} {d}, {A}, {ar(144 + (n % (D + 1)) * 4, 4)}, {0 if z else d}")
                    sc.main(m)
                first[ntl] = False
        for h in range(8):
            def sync(h=h):
                a.wait(vm=f"w{h}", lg="all")
                a("s_barrier")
                if h in self.opt.get("p3st", (5,)): self.stamp()
            bar = -1.0 if h == 0 else (8 * h - D) * 3 - 0.05
            sc.at(bar, sync)
            for g, (src, s, ntl) in enumerate(groups(h)):
                n = h * 8 + g
                for u in range(2):
                    f = lambda n=n, h=h, src=src, s=s, ntl=ntl, u=u: a.ds(
                        f"ds_read_b64_tr_b16 {ar(144 + (n % (D + 1)) * 4 + 2*u, 2)}, v{self.V_TR + src*2 + ntl} offset:{self.wo_slot(h)*8192 + (16*s + 8*u)*256}", f"r{n}")
                    if n < D: sc.at(-0.9 + 0.1 * n + 0.01 * u, f)
                    elif g == 0: sc.at((n - D) * 3 + [-0.04, 0.1][u], f)
                    else: sc.at((n - D) * 3 + [0.1, 1.1][u], f)
            lo = max(bar, 0) + 0.5; hi = (8 * (h + 1) - D) * 3 - 0.1
            for f in range(6):
                off = (f // 3) * 12288 + (f % 3) * 1024 if h % 2 == 0 else self.slot(15) * 8192 + f * 1024
                sc.at(lo + 1.7 + (1.0 if h < 7 else 0.5) * f, lambda f=f, h=h, off=off: a.ds(
                    f"ds_read_b128 {ar(96 + (h & 1) * 24 + f * 4, 4)}, v{self.V_PO + (h & 1)} offset:{off}", f"po{h}_{f}"))
            if h + 1 < 8:
                ow = lo + (self.opt.get("owat", 8) if h < 4 else self.opt.get("owat2", 8))
                ow = min(ow, hi - 5)
                sp = min(2.0, (hi - 1.0 - ow) / 6)
                sc.at(ow, lambda h=h: self.o_check(h + 1))
                for f in range(6): sc.at(ow + 0.1 + sp * f, lambda h=h, f=f: self.o_write1(h + 1, f))
            fills = []
            if h == 0: fills += self.e_rest
            if h >= 1 and h + 2 < 8: fills += [(1, lambda i=i, h=h: self.ld_wo(h + 2, i)) for i in range(8)]
            o2 = []
            for hh, st in zip((5, 6, 7), self.opt.get("o2steps", (o2at, o2at + 1, o2at + 2))):
                if st == h: o2 += [(1, lambda f=f, hh=hh: self.ld_o(hh, f)) for f in range(8)]
            fills = fills + o2 if self.opt.get("wofirst", 1) else o2 + fills
            if fills: sc.spread(fills, lo, hi)
        red = lambda k: (self.wo_slot(5) * 8192 + k * 1024) if k < 8 else (self.wo_slot(6) * 8192 + (k - 8) * 1024)
        for k in range(12):
            sc.at(56 * 3 + 12 + 3.2 + 0.7 * k, lambda k=k: a.ds(f"ds_write_b128 v{self.V_LIN}, {vr(self.ACC3[1][k >> 2] + (k & 3) * 4, 4)} offset:{red(k)}", "rw"))
        def prep():
            a(f"""
            s_mov_b32 s16, s48
            s_mov_b32 s17, s49
            s_add_u32 s16, s16, {PART_OFF}
            s_addc_u32 s17, s17, 0
            s_mov_b32 s18, {PART_BYTES}
            s_lshl_b32 s50, s36, 13
            s_add_u32 s50, s50, s42
            s_lshl_b32 s51, s36, 15
            s_add_u32 s51, s51, s42
            """)
            for j in range(1, 4):
                a(f"s_add_u32 s{56+j}, s36, {j}\ns_and_b32 s{56+j}, s{56+j}, 3\ns_lshl_b32 s{56+j}, s{56+j}, 13\ns_add_u32 s{56+j}, s{56+j}, s51")
        sc.at(64 * 3 - 12, prep)
        for d in range(4):
            for q in range(2): sc.at(64 * 3 - 10 + d * 2 + q, lambda d=d, q=q: a(f"v_mov_b32 v{32 + d*8 + q*4 + 3}, s62"))
        sc.emit()
        a.wait(lg="all")
        a("s_barrier")
        for k in range(12): a.ds(f"ds_read_b128 {vr(112 + k*4, 4)}, v31 offset:{red(k)}", f"rr{k>>2}")
        for i in range(3):
            a.wait(lg=f"rr{i}")
            for k in range(8): a(f"v_pk_add_f32 {vr(ACC + i*16 + 2*k, 2)}, {vr(ACC + i*16 + 2*k, 2)}, {vr(112 + i*16 + 2*k, 2)}")
        self.stamp()
        T = 160; R = 112
        GD = lambda d: 32 + d * 8
        for d in range(4):
            pass
        done = a.newlabel("L_own")
        for d in range(4):
            own = a.newlabel("L_d"); nxt = a.newlabel("L_n")
            a(f"s_cmp_eq_u32 s36, {d}\ns_cbranch_scc1 {own}")
            for k in range(6):
                src = ACC + (k >> 1) * 16 + d * 4 + (k & 1) * 2
                a(f"v_cvt_pk_bf16_f32 v{GD(d) + (k//3)*4 + k%3}, v{src}, v{src+1}")
            a(f"s_add_u32 s26, s50, {d*32768}")
            for q in range(2):
                a(f"buffer_store_dwordx4 {vr(GD(d) + q*4, 4)}, v{self.V_L16}, s[16:19], s26 offen offset:{q*1024} sc1")
            a(f"s_branch {nxt}")
            a.label(own)
            for e in range(12): a(f"v_mov_b32 v{T+e}, v{ACC + (e>>2)*16 + d*4 + (e&3)}")
            a.label(nxt)
        self.stamp()
        def poll(Rb):
            for j in range(1, 4):
                for q in range(2):
                    a(f"buffer_load_dwordx4 {vr(Rb + (j-1)*8 + q*4, 4)}, v{self.V_L16}, s[16:19], s{56+j} offen offset:{q*1024} sc1")
        def check(Rb):
            for g in range(6): a(f"v_xor_b32 v{140+g}, s62, v{Rb + g*4 + 3}")
            a(f"""
            v_or3_b32 v20, v140, v141, v142
            v_or3_b32 v21, v143, v144, v145
            v_or_b32 v20, v20, v21
            v_cmp_ne_u32 vcc, 0, v20
            """)
        lab = a.newlabel("L_pp"); ok = a.newlabel("L_pok"); okb = a.newlabel("L_pokb")
        R2 = 228
        if self.opt.get("poll2", 0):
            a("s_mov_b32 s63, 0")
            poll(R)
            a.label(lab)
            a(f"s_sleep {self.opt.get('psleep', 2)}")
            poll(R2)
            a("s_add_u32 s63, s63, 1\ns_waitcnt vmcnt(6)")
            check(R)
            a(f"s_cbranch_vccz {ok}\ns_sleep {self.opt.get('psleep', 2)}")
            poll(R)
            a("s_waitcnt vmcnt(6)")
            check(R2)
            a(f"s_cbranch_vccz {okb}\ns_cmp_lt_u32 s63, {SPIN_MAX}\ns_cbranch_scc1 {lab}")
            a.label(okb)
            a("s_waitcnt vmcnt(0)")
            a.label(ok)
        else:
            a("s_mov_b32 s63, 0")
            a.label(lab)
            if self.opt.get("psleep", 0): a(f"s_sleep {self.opt['psleep']}")
            poll(R)
            a("s_add_u32 s63, s63, 1\ns_waitcnt vmcnt(0)")
            check(R)
            a(f"s_cmp_ge_u32 s63, {SPIN_MAX}\ns_cbranch_scc1 {ok}\ns_cbranch_vccnz {lab}")
            a.label(ok)
        a.vmq = []
        self.stamp()
        for j in range(3):
            for k in range(6):
                src = R + j * 8 + (k // 3) * 4 + k % 3
                t = T + 12 + 2 * (k & 1)
                a(f"""v_lshlrev_b32 v{t}, 16, v{src}
                v_and_b32 v{t+1}, 0xffff0000, v{src}
                v_pk_add_f32 {vr(T+2*k, 2)}, {vr(T+2*k, 2)}, {vr(t, 2)}""")
        for k in range(6): a(f"v_cvt_pk_bf16_f32 v{T+48+k}, v{T+2*k}, v{T+2*k+1}")
        for i in range(3):
            for k in range(2):
                a(f"s_add_u32 s26, s27, {(i*32 + 2*k)*2048}")
                a.vm(f"buffer_store_short v{T+48+i*2+k}, v{self.V_OUT}, s[8:11], s26 offen", "st")
                a.vm(f"buffer_store_short_d16_hi v{T+48+i*2+k}, v{self.V_OUT}, s[8:11], s26 offen offset:2048", "st")

    def finish(self):
        a = self.a
        if self.stamps:
            a("s_waitcnt vmcnt(0)")
            self.final = True
            self.stamp()
            a(f"""
            s_lshl_b32 s50, s2, 2
            s_add_u32 s50, s50, s24
            s_lshl_b32 s50, s50, 7
            s_add_u32 s50, s50, {STAMP_OFF}
            v_mov_b32 v32, s50
            s_getreg_b32 s51, hwreg(HW_REG_XCC_ID)
            v_mov_b32 v33, s51
            global_store_dword v32, v33, s[48:49] offset:124
            """)
            a("s_sub_u32 s98, s100, s98\nv_mov_b32 v33, s98\nglobal_store_dword v32, v33, s[48:49] offset:120")
            for k in range(self.nst):
                a(f"v_mov_b32 v33, s{64+2*k}\nglobal_store_dword v32, v33, s[48:49] offset:{4*k}")
        a.label("L_end")
        a("s_endpgm")

    def build(self):
        c = self.a.c
        c("---- setup: ids, descriptors, per-lane addresses")
        self.setup()
        c("---- Q projection of both heads (x, wq by LDS-DMA; K of item 0 lands in registers), Q exchange through LDS")
        self.qphase()
        self.a(f"s_mov_b64 s[{self.s_chk}:{self.s_chk+1}], -1")
        c("---- item 0: S^T = K Q^T, P = 2^S, O^T = V^T P^T, row sums by MFMA, range check, publish O")
        self.item(0)
        c("---- item 1")
        self.item(1)
        c("---- output projection over the 8 heads of this workgroup's group, exchange of partial sums, store")
        self.phase3()
        self.finish()
        c("---- fallback: item 0 again with the row's true maximum subtracted")
        self.slow(0)
        c("---- fallback: item 1 again with the row's true maximum subtracted")
        self.slow(1)
        return self.a.text()

def gen(fname, stamps=False, kvpol=" nt", opt=None):
    opt = opt or {}
    k = KF(stamps, kvpol, opt)
    b1 = k.build()
    abl = opt.get("abl", "")
    if abl:
        out = []; main = True; started = False
        for l in b1.split("\n"):
            t = l.strip()
            if t.startswith("v_pk_mul_f32") or ("q" in abl and t.startswith("s_barrier")): started = True
            if t.startswith("s_getreg_b32"): started = False
            if "M" in abl and t.startswith("v_mfma"): continue
            if "M" in abl and t.startswith("s_cbranch_vccnz L_slow"): continue
            if started:
                if "m" in abl and (t.startswith("buffer_") or t.startswith("global_")): continue
                if "m" in abl and t.startswith("s_cmp_ge_u32 s63"): l = "    s_cmp_ge_u32 s63, 0"
                if "m" in abl and t.startswith("s_cbranch_vccnz L_slow"): continue
                if "e" in abl and t.startswith("v_exp_f32"): continue
                if "c" in abl and t.startswith("v_cvt_pk"): continue
                if "w" in abl and t.startswith("ds_write"): continue
                if "r" in abl and t.startswith("ds_read"): continue
                if "b" in abl and t.startswith("s_barrier"): continue
                if "s" in abl and (t.startswith("s_add_u32 m0") or t.startswith("s_add_u32 s26")): continue
            out.append(l)
        b1 = "\n".join(out)
    b1 = fix_hazards(b1, verbose=opt.get("v"))
    k1 = kernel_text(NAME + "_kernel", b1, 512, 102, 256)
    open(fname, "w").write(file_text([f"; @launch grid=(256,1,1) block=(256,1,1) lds={LDS_BYTES}"], [k1]))
    return k.nst
```

```python
import sys, math, struct
sys.path.insert(0, "gen")
from asmlib import *

def f2u(x): return struct.unpack("<I", struct.pack("<f", x))[0]
CSCALE = f2u(math.log2(math.e) / math.sqrt(128.0))

XB = 65536
PB = 131072
STM = PB + 24576
LDS_BYTES = 163840
O_BYTES = 2 * 8 * 16 * 57344
FLAG_OFF = 16 << 20
PART_OFF = 32 << 20
PART_BYTES = 2 * 8 * 4 * 4 * 4 * 4 * 2 * 1024
JUNK = STM + 3072
STAMP_OFF = 64 << 20
SPIN_MAX = 1 << 16
MF32 = "v_mfma_f32_32x32x16_bf16"
MF16 = "v_mfma_f32_16x16x32_bf16"

def interleave(mains, fills, first=0):
    tot = sum(w for w, _ in fills)
    n = len(mains)
    fi = 0; done = 0.0
    def upto(target):
        nonlocal fi, done
        while fi < len(fills) and done + fills[fi][0] * 0.5 <= target:
            fills[fi][1](); done += fills[fi][0]; fi += 1
    first = min(first, tot)
    upto(first)
    for k, m in enumerate(mains):
        m()
        upto(first + (tot - first) * (k + 1) / n)
    while fi < len(fills):
        fills[fi][1](); fi += 1

def merge(*lists):
    lists = [l for l in lists if l]
    tots = [sum(w for w, _ in l) for l in lists]
    pos = [0] * len(lists); cum = [0.0] * len(lists)
    out = []
    while any(pos[i] < len(lists[i]) for i in range(len(lists))):
        best = min((i for i in range(len(lists)) if pos[i] < len(lists[i])),
                   key=lambda i: (cum[i] + lists[i][pos[i]][0] * 0.5) / tots[i])
        out.append(lists[best][pos[best]]); cum[best] += lists[best][pos[best]][0]; pos[best] += 1
    return out

class Sched:
    def __init__(self): self.mains = []; self.ops = []
    def main(self, fn): self.mains.append(fn); return len(self.mains) - 1
    def at(self, pos, fn): self.ops.append((pos, len(self.ops), fn))
    def spread(self, fills, lo, hi):
        tot = sum(w for w, _ in fills); c = 0.0
        for w, fn in fills:
            self.at(lo + (hi - lo) * (c + w * 0.5) / tot, fn); c += w
    def emit(self):
        ops = sorted(self.ops, key=lambda o: (o[0], o[1])); k = 0
        while k < len(ops) and ops[k][0] < 0: ops[k][2](); k += 1
        for i, m in enumerate(self.mains):
            m()
            while k < len(ops) and ops[k][0] < i + 1: ops[k][2](); k += 1
        while k < len(ops): ops[k][2](); k += 1

class KF:
    V_LIN = 1; V_KSRC = 2; V_VSRC = 6; V_L16 = 7; V_WSRC = 8; V_XSRC = 9; V_QW = 10; V_ONES = 8
    V_KA = 12; V_WA = 20; V_VA = 22; V_PW = 24; V_PR = 25; V_STW = 26; V_STR = 27; V_OST = 28; V_FL = 29; V_FR = 30
    V_F = 32; SB = [64, 112]; V_P = 160; QACC = 96
    A_O = 192; A_F = 240
    V_WO = 2; V_OUT = 12; V_TR = 13; V_PO = 17

    def __init__(self, stamps=False, kvpol=" nt", opt=None):
        self.a = Asm(); self.stamps = stamps; self.kvpol = kvpol; self.nst = 0
        self.opt = opt or {}
        self.final = False
        self.k_exact = set()
        self.nreg = self.opt.get('nreg', 4)
        self.in3 = False
        self.fl0_done = False
        self.fl1_done = False
        self.fl0_checked = False
        self.o_issued = 0
        self.e_rest = []
    def tstamp(self):
        if self.opt.get("trace") and self.nst < 14: self.stamp(True)
    def stamp(self, t=False):
        if not self.stamps: return
        if self.opt.get("trace") and not t and self.nst > 0 and not self.final: return
        if self.opt.get("only3") and self.nst > 0 and not self.in3: return
        if self.opt.get("lite") and self.nst > 0 and not self.final: return
        a = self.a
        r = 64 + 2 * self.nst; self.nst += 1
        assert r + 1 <= 93
        if self.nst - 1 in self.opt.get("clk", ()):
            q = 98 + 2 * list(self.opt["clk"]).index(self.nst - 1)
            a(f"s_memtime s[{q}:{q+1}]")
        a(f"{'s_memtime' if self.opt.get('cyc') else 's_memrealtime'} s[{r}:{r+1}]\ns_waitcnt lgkmcnt(0)"); a.lgq = []
    def S(self, g, i): return self.SB[g & 1] + i * 16
    def P(self, g, i, s): return self.V_P + g * 24 + (i * 2 + s) * 4
    def slot(self, idx): return 0 if idx < self.nreg else (idx - self.nreg + 1) % 4
    def kland(self, g, i):
        return vr(192 + g * 32 + i * 4, 4) if g < 2 else ar(192 + (g - 2) * 32 + i * 4, 4)

    def lane_parts(self, t):
        self.a(f"""
        v_mbcnt_lo_u32_b32 v{t}, -1, 0
        v_mbcnt_hi_u32_b32 v{t}, -1, v{t}
        v_lshrrev_b32 v{t+1}, 4, v{t}
        v_and_b32 v{t+2}, 15, v{t}
        v_lshrrev_b32 v{t+3}, 5, v{t}
        v_and_b32 v{t+4}, 31, v{t}
        """)
    def ksrc_addrs(self, t):
        for ii in range(4):
            self.a(f"""
            v_add_u32 v{t+6}, {4*ii}, v{t+1}
            v_xor_b32 v{t+6}, v{t+2}, v{t+6}
            v_lshlrev_b32 v{t+6}, 4, v{t+6}
            v_lshl_add_u32 v{self.V_KSRC+ii}, v{t+1}, 8, v{t+6}
            """)
    def ka_addrs(self, t, base):
        for j in range(8):
            self.a(f"""
            v_add_u32 v{t+6}, {2*j}, v{t+3}
            v_xor_b32 v{t+6}, v{t+2}, v{t+6}
            v_lshlrev_b32 v{t+6}, 4, v{t+6}
            v_lshl_add_u32 v{t+6}, v{t+4}, 8, v{t+6}
            v_add_u32 v{self.V_KA+j}, {base}, v{t+6}
            """)
    def setup(self):
        a = self.a
        a("s_cmp_ge_u32 s2, 256\ns_cbranch_scc1 L_end")
        self.stamp()
        xh2 = self.opt.get('map', 'xh2') == 'xh2'
        a(f"""
        s_and_b32 s3, s2, 7
        s_lshr_b32 s34, s2, 3
        s_lshr_b32 s35, s3, 2
        s_mul_i32 s36, s35, 40
        s_add_u32 s38, s0, s36
        s_addc_u32 s39, s1, 0
        s_load_dwordx8 s[40:47], s[38:39], 0
        s_load_dwordx2 s[48:49], s[0:1], 96
        v_lshrrev_b32 v32, 6, v0
        s_and_b32 s36, s3, 3
        v_readfirstlane_b32 s24, v32
        s_lshl_b32 s36, s36, {1 if xh2 else 3}
        s_lshr_b32 s37, s34, 3
        s_lshl_b32 s37, s37, {3 if xh2 else 1}
        s_add_u32 s36, s36, s37
        s_and_b32 s37, s34, 7
        """)
        a(f"""
        s_lshl_b32 s25, s37, 5
        s_add_u32 s25, s25, s36
        s_lshl_b32 s50, s35, 8
        s_add_u32 s50, s50, s25
        s_mul_i32 s33, s50, 28672
        s_mul_i32 s50, s24, 6144
        s_add_u32 s33, s33, s50
        s_lshl_b32 s25, s25, 17
        s_lshl_b32 s50, s24, 13
        s_add_u32 s25, s25, s50
        s_lshl_b32 s28, s24, 15
        s_mul_i32 s30, s37, 98304
        s_lshl_b32 s31, s36, 8
        s_lshl_b32 s50, s24, 7
        s_add_u32 s31, s31, s50
        s_lshl_b32 s32, s24, 14
        s_lshl_b32 s27, s24, 10
        s_add_u32 s27, s27, {XB}
        s_lshr_b32 s50, s34, 3
        s_add_u32 s50, s50, s37
        """)
        for kc in range(4):
            if self.opt.get("rot", 1): a(f"s_add_u32 s51, s50, {kc}\ns_and_b32 s51, s51, 3")
            else: a(f"s_mov_b32 s51, {kc}")
            a(f"""s_lshl_b32 s{52+kc}, s51, 8
            s_add_u32 s{52+kc}, s{52+kc}, s30
            s_lshl_b32 s{56+kc}, s51, 20
            s_add_u32 s{56+kc}, s{56+kc}, s31""")
        a(self.opt.get("trot", "s_mov_b32 s50, 0"))
        for g in range(4):
            a(f"s_add_u32 s51, s50, {g}\ns_and_b32 s51, s51, 3\ns_lshl_b32 s51, s51, 15\ns_add_u32 s{94+g}, s25, s51")
        self.lane_parts(33)
        a(f"""
        v_lshlrev_b32 v{self.V_L16}, 4, v33
        s_lshl_b32 s50, s24, 2
        v_add_u32 v39, s50, v34
        v_xor_b32 v40, v35, v39
        v_lshlrev_b32 v40, 4, v40
        v_lshl_add_u32 v{self.V_XSRC}, v39, 10, v40
        v_lshrrev_b32 v39, 3, v33
        v_and_b32 v40, 7, v33
        v_and_b32 v41, 1, v34
        v_lshlrev_b32 v41, 2, v41
        v_xor_b32 v40, v40, v41
        v_lshlrev_b32 v40, 4, v40
        v_lshl_add_u32 v{self.V_WSRC}, v39, 13, v40
        """)
        self.ksrc_addrs(33)
        a("v_lshlrev_b32 v28, 7, v33")
        if self.opt.get("codepf", 0):
            a(f"""s_getpc_b64 s[100:101]
            s_lshl_b32 s50, s34, 11
            v_and_b32 v39, 0x780, v28
            v_add_u32 v39, s50, v39
            v_min_u32 v39, {self.opt["codepf"]}, v39
            global_load_dword v0, v39, s[100:101]""")
        a(f"""
        s_mov_b32 s6, 786432
        s_mov_b32 s7, 0x20000
        s_mov_b32 s10, 4194304
        s_mov_b32 s11, 0x20000
        s_mov_b32 s14, 33554432
        s_mov_b32 s15, 0x20000
        s_mov_b32 s18, 33554432
        s_mov_b32 s19, 0x20000
        s_mov_b32 s22, {O_BYTES}
        s_mov_b32 s23, 0x20000
        s_waitcnt lgkmcnt(0)
        s_mov_b64 s[4:5], s[40:41]
        s_mov_b64 s[8:9], s[46:47]
        s_mov_b64 s[12:13], s[42:43]
        s_mov_b64 s[16:17], s[44:45]
        s_mov_b64 s[20:21], s[48:49]
        s_load_dwordx2 s[40:41], s[38:39], 32
        s_load_dwordx4 s[44:47], s[0:1], 80
        """)
    def setup2(self):
        a = self.a
        a(f"""
        v_lshlrev_b32 v39, 2, v34
        v_xor_b32 v39, v35, v39
        v_lshlrev_b32 v39, 4, v39
        v_lshl_add_u32 v{self.V_VSRC}, v34, 8, v39
        v_add_u32 v{self.V_LIN}, s28, v{self.V_L16}
        """)
        self.ka_addrs(33, XB)
        a(f"""
        v_lshrrev_b32 v39, 2, v35
        v_lshl_add_u32 v40, v36, 3, v39
        v_lshlrev_b32 v40, 7, v40
        v_lshrrev_b32 v41, 3, v35
        v_lshl_add_u32 v40, v41, 6, v40
        v_and_b32 v41, 1, v34
        v_lshl_add_u32 v40, v41, 5, v40
        v_and_b32 v42, 3, v35
        v_lshl_add_u32 v40, v42, 3, v40
        v_add_u32 v{self.V_WA}, s32, v40
        v_xor_b32 v{self.V_WA+1}, 64, v{self.V_WA}
        v_lshl_add_u32 v40, v36, 2, v39
        v_lshlrev_b32 v40, 8, v40
        v_xor_b32 v43, s24, v39
        v_lshl_add_u32 v40, v43, 6, v40
        v_lshl_add_u32 v40, v41, 5, v40
        v_lshl_add_u32 v{self.V_VA}, v42, 3, v40
        v_add_u32 v{self.V_VA+1}, 0x10000, v{self.V_VA}
        s_mul_i32 s50, s24, 3072
        s_add_u32 s50, s50, {PB}
        v_add_u32 v{self.V_PW}, s50, v{self.V_L16}
        v_add_u32 v{self.V_PR}, {PB}, v{self.V_L16}
        v_lshlrev_b32 v40, 4, v37
        v_add_u32 v{self.V_STR}, {STM}, v40
        s_lshl_b32 s50, s24, 2
        v_add_u32 v{self.V_STW}, s50, v{self.V_STR}
        v_lshlrev_b32 v40, 4, v37
        v_lshl_add_u32 v40, v36, 3, v40
        s_mul_i32 s50, s24, 12288
        s_add_u32 s50, s50, {PB - 24576}
        s_add_u32 s51, s50, 8192
        s_add_u32 s26, s28, 65536
        s_cmp_lt_u32 s24, 2
        s_cselect_b32 s50, s28, s50
        s_cselect_b32 s51, s26, s51
        v_add_u32 v{self.V_QW}, s50, v40
        v_add_u32 v11, s51, v40
        v_add_u32 v31, 0x10000, v{self.V_L16}
        s_mov_b32 s42, {CSCALE:#x}
        s_mov_b32 s43, {CSCALE:#x}
        s_waitcnt lgkmcnt(0)
        """)
        lab = a.newlabel("L_nonce")
        a(f"""s_or_b32 s50, s2, s24
        s_cmp_lg_u32 s50, 0
        s_cbranch_scc1 {lab}
        s_memrealtime s[50:51]
        s_waitcnt lgkmcnt(0)
        s_or_b32 s50, s50, 1
        v_mov_b32 v39, 0
        v_mov_b32 v40, s50
        global_store_dword v39, v40, s[46:47] sc1""")
        a.label(lab)

    def ld_x(self, kc, m):
        a = self.a
        a.sset("m0", "s27", kc*24576 + m*4096); a(f"s_add_u32 s26, s{52+kc}, {m*16384}")
        a.vm(f"buffer_load_dwordx4 v{self.V_XSRC}, s[4:7], s26 offen lds", f"x{kc}")
    def ld_wq(self, ks, e):
        a = self.a
        a.sset("m0", "s32", (ks%8)*2048 + e*1024); a(f"s_add_u32 s26, s{56+(ks>>3)}, {((ks&7)*16 + e*8)*8192}")
        a.vm(f"buffer_load_dwordx4 v{self.V_WSRC}, s[8:11], s26 offen lds", f"wq{ks}")
    def ld_kreg(self, n):
        a = self.a
        g, i = n >> 3, n & 7
        a.sset("s60", f"s{94+g}", (i>>2)*4096)
        a.vm(f"buffer_load_dwordx4 {self.kland(g, i)}, v{self.V_KSRC+(i&3)}, s[12:15], s60 offen offset:{(i&3)*1024}{self.kvpol}", f"T{g}")
    def ld_piece(self, idx, i, slot=None):
        a = self.a
        item, kind, g = idx >> 3, (idx >> 2) & 1, idx & 3
        if slot is None: slot = self.slot(idx)
        srd = "s[16:19]" if kind else "s[12:15]"
        a.sset("m0", "s28", slot*8192 + (i>>2)*4096); a.sset("s29", f"s{94+g}", item*131072 + (i>>2)*4096)
        vo = self.V_VSRC if kind else self.V_KSRC + (i & 3)
        a.vm(f"buffer_load_dwordx4 v{vo}, {srd}, s29 offen offset:{(i&3)*1024}{self.kvpol} lds", f"T{idx}" if not (kind and i >= 4) else f"T{idx}b")
    def tile_fills(self, idx, lo=0, hi=8, w=24):
        if idx <= 15:
            return [(w, (lambda i=i: self.ld_piece(idx, i))) for i in range(lo, hi)]
        return [(w, (lambda i=i: self.ld_wo(idx - 16, i))) for i in range(lo, hi)]

    SCHED = {
        4: ["X1"], 5: ["X2", "Q0a", "Q0b"], 6: ["Q1a", "Q1b", "Q2a", "Q2b"], 7: ["P0", "P1"],
        8: ["P2", "P3"], 9: ["P4", "P5"], 10: ["P6", "P7"], 11: ["q0a", "q0b"],
        12: ["q1a", "q1b"], 13: ["q2a", "q2b"], 14: ["q3a", "q3b"], 15: ["p0", "p1"],
        16: ["p2", "p3"], 17: ["p4", "p5"], 18: ["p6", "p7"],
    }
    ORDER = (["X1", "X2"] + [f"Q{g}{h}" for g in range(4) for h in "ab"] + [f"P{k}" for k in range(8)] + ["E"] +
             [f"q{g}{h}" for g in range(4) for h in "ab"] + [f"p{k}" for k in range(8)] + ["e"])
    def earliest(self, idx):
        if idx < self.nreg + 3: return "X1"
        if idx == self.nreg + 3: return f"Q{self.nreg}a" if self.nreg < 4 else "P0"
        p = idx - 4
        if p < 3: return f"Q{p+1}a"
        if p == 3: return "P0"
        g = p & 3
        if p in (4, 5, 6): return f"P{2*g+2}"
        if p == 7: return "E"
        if p in (8, 9, 10): return f"q{g+1}a"
        if p == 11: return "p0"
        return f"p{2*g+2}"
    def seg_fills(self, seg):
        sch = dict(self.SCHED); sch.update(self.opt.get("sched", {}))
        out = []
        for idx in sorted(sch):
            segs = sch[idx]
            if seg in segs:
                assert self.ORDER.index(segs[0]) >= self.ORDER.index(self.earliest(idx)), (idx, segs)
                k = segs.index(seg); n = len(segs)
                out += self.tile_fills(idx, 8 * k // n, 8 * (k + 1) // n)
        return out

    def q_fills(self, tau):
        kskip = self.opt.get("kskip", 2)
        f = []
        if tau < 32: f += [(1, lambda e=e: self.ld_wq(tau, e)) for e in range(2)]
        c = (tau >> 3) + 1
        if c <= 3 and 1 <= (tau & 7) <= 6: f.append((1, lambda: self.ld_x(c, (tau & 7) - 1)))
        if self.opt.get("kpos"):
            if any(tau in d for d in self.opt["kpos"].values()): f.append((1, lambda: self.k_burst(tau)))
            for g, (t0, per) in self.opt.get("kspread", {}).items():
                for n in range(8):
                    if t0 + n // per == tau: f.append((1, lambda g=g, n=n: self.ld_kreg(g * 8 + n)))
                self.k_exact.add(g)
            return f
        if tau >= kskip and self.kplan < 32:
            n = self.kplan; self.kplan += 1
            f.append((1, lambda: self.ld_kreg(n)))
        return f
    def k_burst(self, tau):
        a = self.a
        ds = list(self.opt["kpos"].values())
        if all(d.get(tau) == ds[0].get(tau) for d in ds):
            for g in ds[0].get(tau, []):
                for i in range(8): self.ld_kreg(g * 8 + i)
                self.k_exact.add(g)
            return
        save = list(a.vmq)
        for ph, d in sorted(self.opt["kpos"].items()):
            if tau in d:
                lab = a.newlabel("L_kb")
                a(f"s_cmp_lg_u32 s61, {ph}\ns_cbranch_scc1 {lab}")
                for g in d[tau]:
                    for i in range(8): self.ld_kreg(g * 8 + i)
                a.label(lab)
        a.vmq = save
    def k_model(self):
        rest = [g for g in range(self.nreg) if g not in self.k_exact]
        if rest:
            q = self.a.vmq
            k = min([i for i, t in enumerate(q) if t[0] == "T"], default=len(q))
            assert all(min(self.k_exact, default=9) > g for g in rest)
            self.a.vmq = q[:k] + [f"T{g}" for g in rest for _ in range(8)] + q[k:]
    def q_read_ops(self, ks):
        a = self.a
        b = 32 + (ks & 1) * 20
        kc, jj = ks >> 3, ks & 7
        w = lambda t, u: (lambda: a.ds(f"ds_read_b64_tr_b16 {vr(b + t*4 + u*2, 2)}, v{self.V_WA+t} offset:{(ks%8)*2048 + u*512}", f"qw{ks}_{t}"))
        x = lambda i: (lambda: a.ds(f"ds_read_b128 {vr(b + 8 + i*4, 4)}, v{self.V_KA+jj} offset:{(kc&1)*24576 + i*8192}", f"qx{ks}_{i}"))
        return [w(0, 0), w(0, 1), x(0), x(1), x(2), w(1, 0), w(1, 1)]
    def qphase(self):
        a = self.a
        self.kplan = 0
        if self.opt.get("poison", "none") == "start":
            for _, f in self.poison_fills(76): f()
        if self.opt.get("kpos"):
            a(self.opt.get("ksel", "s_lshr_b32 s61, s34, 3\ns_add_u32 s61, s61, s3") + f"\ns_and_b32 s61, s61, {len(self.opt['kpos'])-1}")
            self.k_burst(-1)
        for m in range(6): self.ld_x(0, m)
        for _, f in self.q_fills(0): f()
        self.setup2()
        if self.opt.get("poison", "none") == "start2":
            for _, f in self.poison_fills(76): f()
        for tau in range(1, 7):
            for _, f in self.q_fills(tau): f()
        a.wait(vm=["x0", "wq0"])
        a("s_barrier")
        self.stamp()
        for f in self.q_read_ops(0): f()
        sc = Sched()
        for ks in range(32):
            b = 32 + (ks & 1) * 20
            base = len(sc.mains)
            for t in range(2):
                for i in range(3):
                    def mf(t=t, i=i, ks=ks, b=b):
                        a.wait(lg=[f"qw{ks}_{t}", f"qx{ks}_{i}"])
                        acc = vr(self.QACC + (t * 3 + i) * 16, 16)
                        a(f"{MF32} {acc}, {vr(b + t*4, 4)}, {vr(b + 8 + i*4, 4)}, {acc if ks else 0}")
                    sc.main(mf)
            if ks + 1 < 32:
                def pre(ks=ks):
                    a.wait(vm=[f"wq{ks+1}", f"x{(ks+1)>>3}"])
                    if (ks + 1) % 8 == 0: a("s_barrier")
                    if ks + 1 == 16:
                        for j in range(8): a(f"v_add_u32 v{self.V_KA+j}, 49152, v{self.V_KA+j}")
                sc.at(base + 0.0, pre)
                for k, f in enumerate(self.q_read_ops(ks + 1)): sc.at(base + [0.1, 0.2, 1.1, 2.1, 3.1, 4.1, 4.2][k], f)
            if self.opt.get("wopf") == f"k{ks}": sc.at(base + 4.6, self.wopf_early)
            if ks == 16:
                sc.at(base + 5.0, lambda: (a("v_mov_b32 v73, 0"), a.vm("global_load_dword v72, v73, s[46:47] sc1", "nonce")))
            for k, (_, f) in enumerate(self.q_fills(ks + 7)): sc.at(base + [1.5, 2.5, 3.5, 5.5, 0.5, 4.5, 5.6, 5.7][k], f)
        sc.emit()
        if self.opt.get("kpos"):
            self.k_burst(99)
        else:
            while self.kplan < 32:
                self.ld_kreg(self.kplan); self.kplan += 1
        a(f"s_sub_u32 s50, s28, {XB + 49152}")
        for j in range(8): a(f"v_add_u32 v{self.V_KA+j}, s50, v{self.V_KA+j}")
        a.wait(vm="nonce")
        a("v_readfirstlane_b32 s62, v72")
        if self.opt.get("kpos"): self.k_model()
        a("s_barrier")
        self.stamp()
        mains = []
        for t in range(2):
            for i in range(3):
                def cv(t=t, i=i):
                    tb = self.QACC + (t * 3 + i) * 16
                    for k in range(8): a(f"v_pk_mul_f32 {vr(tb+2*k, 2)}, {vr(tb+2*k, 2)}, s[42:43]")
                    for k in range(8): a(f"v_cvt_pk_bf16_f32 v{tb+k}, v{tb+2*k}, v{tb+2*k+1}")
                    for u in range(2):
                        for pc in range(2):
                            f = (t*2+u)*3+i
                            a.ds(f"ds_write_b64 v{self.V_QW if f < 8 else 11}, {vr(tb + u*4 + pc*2, 2)} offset:{(f%8)*1024 + pc*512}", "qw")
                mains.append(cv)
        interleave(mains, self.seg_fills("X1"), first=24)
        a.wait(lg="all")
        a("s_barrier")
        for r in range(4): a(f"v_mov_b32 v{self.V_ONES+r}, 0x3f803f80")
        xh2 = self.opt.get('map', 'xh2') == 'xh2'
        a(f"""
        s_mov_b32 s4, s40
        s_mov_b32 s5, s41
        s_mov_b32 s6, 4194304
        s_lshr_b32 s50, s37, 1
        s_and_b32 s51, s3, 3
        s_lshl_b32 s50, s50, {3 if xh2 else 1}
        s_lshl_b32 s51, s51, {1 if xh2 else 3}
        s_add_u32 s50, s50, s51
        s_and_b32 s51, s37, 1
        s_add_u32 s50, s50, s51
        s_lshl_b32 s32, s50, 17
        s_lshl_b32 s50, s24, 15
        s_add_u32 s32, s32, s50
        s_lshr_b32 s50, s34, 3
        s_lshl_b32 s50, s50, 8
        s_add_u32 s32, s32, s50
        """)
        mains = []
        late = []
        for hd in range(2):
            for sp in range(8):
                for i in range(3):
                    f = (sp & 3) * 3 + i; ws = 2 * hd + (sp >> 2)
                    dst = ar(hd * 96 + (sp * 3 + i) * 4, 4)
                    if hd == 0: t = f"ds_read_b128 {dst}, v{self.V_L16 if f < 8 else 31} offset:{ws*32768 + (f%8)*1024}"
                    else: t = f"ds_read_b128 {dst}, v{self.V_PR} offset:{(ws&1)*12288 + f*1024}"
                    if hd == 1: late.append(t)
                    else: mains.append(lambda t=t: a.ds(t, "qx"))
        self.q2late = late
        self.nonce_check()
        if self.opt.get("local", 1):
            a(f"""s_getreg_b32 s50, hwreg(HW_REG_XCC_ID)
            s_lshl_b32 s50, s50, 1
            s_and_b32 s50, s50, 30
            s_xor_b32 s36, s62, s50
            v_mov_b32 v20, s31
            v_mov_b32 v21, s36""")
            a.vm("global_store_dword v20, v21, s[48:49] offset:-4096 sc1", "idst")
            self.p3_flagaddr()
        interleave(mains, self.seg_fills("X2"))
        a.wait(lg="all")
        a("s_barrier")
        self.stamp()
    def wopf_early(self):
        a = self.a
        xh2 = self.opt.get('map', 'xh2') == 'xh2'
        a(f"""
        s_lshr_b32 s50, s37, 1
        s_and_b32 s51, s3, 3
        s_lshl_b32 s50, s50, {3 if xh2 else 1}
        s_lshl_b32 s51, s51, {1 if xh2 else 3}
        s_add_u32 s50, s50, s51
        s_and_b32 s51, s37, 1
        s_add_u32 s50, s50, s51
        s_lshl_b32 s51, s50, 17
        s_lshl_b32 s50, s24, 15
        s_add_u32 s51, s51, s50
        s_lshr_b32 s50, s34, 3
        s_lshl_b32 s50, s50, 8
        s_add_u32 s51, s51, s50
        v_lshrrev_b32 v74, 8, v28
        v_and_b32 v75, 0x80, v28
        v_lshl_add_u32 v74, v74, 10, v75
        v_add_u32 v74, s51, v74""")
        a.vm("global_load_dword v0, v74, s[40:41]", "pfw")
    def wopf2_fills(self):
        a = self.a
        def f():
            a(f"""s_and_b32 s50, s37, 1
            s_lshl_b32 s51, s50, 17
            s_lshl_b32 s50, s50, 14
            s_sub_u32 s26, s32, s51
            s_add_u32 s26, s26, s50
            s_add_u32 s26, s26, 131072
            v_and_b32 v20, 0xf00, v28
            v_and_b32 v21, 0x80, v28
            v_lshl_add_u32 v20, v20, 2, v21""")
            a.vm(f"buffer_load_dword v0, v20, s[4:7], s26 offen", "pfw")
        return [(24, f)]
    def wopf_fills(self):
        a = self.a
        def f():
            a(f"""v_lshrrev_b32 v20, 8, v28
            v_and_b32 v21, 0x80, v28
            v_lshl_add_u32 v20, v20, 10, v21""")
            a.vm(f"buffer_load_dword v0, v20, s[4:7], s32 offen", "pfw")
        return [(24, f)]
    def poison_fills(self, R=232):
        a = self.a
        def f(k):
            if k == 0:
                for r in range(4): a(f"v_mov_b32 v{R+r}, -1")
            a(f"s_add_u32 s26, s33, {24576 + k*1024}")
            a.vm(f"buffer_store_dwordx4 {vr(R, 4)}, v{self.V_L16}, s[20:23], s26 offen sc1", "poison")
        return [(24, lambda k=k: f(k)) for k in range(6)]
    def q2_fills(self):
        a = self.a
        return [(8, lambda t=t: a.ds(t, "q2")) for t in self.q2late]

    def k_write(self, g, i):
        self.a.ds(f"ds_write_b128 v{self.V_LIN}, {self.kland(g, i)} offset:{self.slot(g)*8192 + i*1024}", "kw")
    def k_read(self, idx, j):
        self.a.ds(f"ds_read_b128 {vr(self.V_F + j*4, 4)}, v{self.V_KA+j} offset:{self.slot(idx)*8192}", f"kf{idx}_{j}")
    def exp_fills(self, g, halves=(0, 1)):
        a = self.a
        f = []
        for s in halves:
            for i in range(3):
                b = self.S(g, i)
                for r in range(8*s, 8*s+8): f.append((8, lambda r=r, b=b: a(f"v_exp_f32 v{b+r}, v{b+r}")))
                for k in range(4):
                    f.append((4, lambda b=b, k=k, s=s, i=i: a(f"v_cvt_pk_bf16_f32 v{self.P(g, i, s)+k}, v{b+8*s+2*k}, v{b+8*s+2*k+1}")))
        return f
    def qk_tile(self, item, g):
        a = self.a
        idx = item * 8 + g
        if g == 0:
            a.wait(vm=f"T{idx}")
            self.tstamp()
            if item == 0:
                for i in range(8): self.k_write(0, i)
            for j in range(4): self.k_read(idx, j)
        sc = Sched()
        for j in range(8):
            for i in range(3):
                def m(j=j, i=i):
                    if i == 0: a.wait(lg=f"kf{idx}_{j}")
                    d = vr(self.S(g, i), 16)
                    a(f"{MF32} {d}, {vr(self.V_F + j*4, 4)}, {ar(item*96 + (j*3+i)*4, 4)}, {d if j else 0}")
                sc.main(m)
        for j in range(4, 8): sc.at(j - 4 + 0.0, lambda j=j: self.k_read(idx, j))
        def mid():
            if g < 3:
                a.wait(vm=f"T{idx+1}")
                self.tstamp()
            if item == 1 and g == self.opt.get("pub0at", 1): a.wait(vm="O0")
            if item == 1 and "O0" not in a.vmq and not self.fl0_done:
                self.fl0_done = True
                self.flag_store(0)
        staged = item == 0 and g + 1 < self.nreg
        sc.at(4.0 if staged else 12.0, mid)
        if g < 3:
            if staged:
                for i in range(8): sc.at(4.1 + i, lambda i=i: self.k_write(g + 1, i))
            for j in range(4): sc.at(13.0 + 3 * j, lambda j=j: self.k_read(idx + 1, j))
        ex = self.exp_fills(g - 1) if g > 0 else []
        other = []
        if item == 0 and g == 0: other = self.q2_fills()
        if g == 3: other = [(16, lambda i=i: self.p_write(0, i)) for i in range(3)]
        if item == 0 and g == 2 and self.opt.get("poison", "none") == "Q2": other = self.poison_fills()
        if item == 0 and g == 3 and self.opt.get("wopf", 1) == 1: other = other + self.wopf_fills()
        if item == 1 and g == 3: other = [(24, lambda: (self.p3_flagaddr(), self.flag_load(0)))] + other
        if item == 0 and g == 3 and self.opt.get("local", 1):
            other = other + [(24, lambda: a.vm(f"global_load_dword v{self.V_FR}, v{self.V_FL}, s[48:49] offset:-4096 sc1", "ids"))]
        seg = ("Q" if item == 0 else "q") + str(g)
        if self.opt.get("wopf") == seg: other = other + self.wopf_fills()
        if ex: sc.spread(ex, 3.0, 24)
        if other: sc.spread(other, 0.5, 24)
        for h, (lo, hi) in zip("ab", ((0.5, 12), (12.5, 24))):
            f = self.seg_fills(seg + h)
            if f: sc.spread(f, lo, hi)
        sc.emit()
        if item == 0 and g == 1: a("s_barrier")

    def p_write(self, hf, i):
        a = self.a
        g, s = hf >> 1, hf & 1
        if 1:
            a.ds(f"ds_write_b128 v{self.V_PW}, {vr(self.P(g, i, s), 4)} offset:{s*12288 + i*1024}", "pw")
    def pv_buf(self, n):
        return [("v", self.V_F), ("v", self.V_F + 16), ("a", self.A_F)][n % 3]
    def pv_read_ops(self, sl, s, wsrc, n):
        a = self.a
        f, b = self.pv_buf(n)
        ops = [(lambda u=u: a.ds(f"ds_read_b64_tr_b16 {vr(b + 2*u, 2, f)}, v{self.V_VA + (wsrc>>1)} offset:{(wsrc&1)*32768 + sl*8192 + (16*s + 8*u)*256}", f"pv{n}_0")) for u in range(2)]
        ops += [(lambda i=i: a.ds(f"ds_read_b128 {vr(b + 4 + 4*i, 4, f)}, v{self.V_PR} offset:{s*12288 + wsrc*3072 + i*1024}", f"pv{n}_{i}")) for i in range(3)]
        return ops
    def pv_reads(self, sl, s, wsrc, n):
        for f in self.pv_read_ops(sl, s, wsrc, n): f()
    ONES_AT = {0: (0, 1), 1: (2, 3), 2: (4,), 3: (5,), 4: (6,), 5: (7,)}
    RPOS = [0.1, 0.2, 0.3, 1.1, 2.1]
    def pv(self, item):
        a = self.a
        sc = Sched()
        gstart = {}; sub = {}
        for hf in range(8):
            sub[hf] = len(sc.mains)
            for wsrc in range(4):
                n = hf * 4 + wsrc
                if wsrc == (0 if hf == 0 else 1):
                    for k in self.ONES_AT.get(hf, ()):
                        for i in range(3):
                            def o(k=k, i=i):
                                d = vr(self.SB[0] + i * 16, 16)
                                a(f"{MF32} {d}, {vr(self.V_ONES, 4)}, {vr(self.P(k >> 1, i, k & 1), 4)}, {d if k else 0}")
                            sc.main(o)
                gstart[n] = len(sc.mains)
                for i in range(3):
                    def m(n=n, i=i):
                        a.wait(lg=[f"pv{n}_0", f"pv{n}_{i}"])
                        f, b = self.pv_buf(n)
                        d = ar(self.A_O + i * 16, 16)
                        a(f"{MF32} {d}, {vr(b, 4, f)}, {vr(b + 4 + 4*i, 4, f)}, {d if n else 0}")
                    sc.main(m)
        sub[8] = len(sc.mains)
        bar = {}
        for hf in range(8):
            g, s = hf >> 1, hf & 1
            idx = item * 8 + 4 + g
            def sync(hf=hf, s=s, idx=idx):
                if self.opt.get("halfv", 1): a.wait(vm=(f"T{idx}" if s == 0 else f"T{idx}b"), lg="all")
                else: a.wait(vm=([f"T{idx}", f"T{idx}b"] if s == 0 else None), lg="all")
                if s == 0: self.tstamp()
                a("s_barrier")
                if item == 1 and hf == self.opt.get("chk0at", 1): self.flag_check(0)
            bar[hf] = -1.0 if hf == 0 else gstart[4 * hf - 2] - 0.05
            sc.at(bar[hf], sync)
            for wsrc in range(4):
                n = hf * 4 + wsrc
                ops = self.pv_read_ops(self.slot(idx), s, wsrc, n)
                for k, f in enumerate(ops):
                    if n < 2: sc.at(-0.9 + 0.1 * n + 0.01 * k, f)
                    elif wsrc == 0: sc.at(gstart[n - 2] + [-0.04, -0.03, -0.02, 0.1, 1.1][k], f)
                    else: sc.at(gstart[n - 2] + self.RPOS[k], f)
        bar[8] = sub[8]
        if self.opt.get("earlysum", 1):
            sc.at(bar[7] + 3.3, lambda: self.sum_reads())
            sc.at(bar[7] + 9.3, lambda: self.sum_eval())
        for hf in range(8):
            lo, hi = max(bar[hf], 0) + 0.5, bar[hf + 1] - 0.1
            if hf + 1 < 8:
                for i in range(3): sc.at(lo + 1.0 + 2 * i, lambda hf=hf, i=i: self.p_write(hf + 1, i))
            ld = self.seg_fills(("P" if item == 0 else "p") + str(hf))
            ex = []
            if hf < 4:
                e = self.exp_fills(3, (hf >> 1,))
                ex = e[:len(e)//2] if hf % 2 == 0 else e[len(e)//2:]
            other = []
            if hf == 6:
                sc.at(hi - 4, lambda: [a.ds(f"ds_write_b32 v{self.V_STW}, v{self.SB[0] + i*16} offset:{1536 + i*512}", "st") for i in range(3)])
            if item == 1:
                if self.opt.get("wopf") == f"p{hf}": ld = ld + self.wopf_fills()
                c0 = self.opt.get("chk0at", 1)
                if hf >= c0:
                    self.fl0_checked = True
                    nseg = self.opt.get("ospan", 4)
                    upto = min(18, (18 * (hf - c0 + 1) + nseg - 1) // nseg)
                    other += [(24, lambda n=n: self.ld_o(1 + n // 6, n % 6)) for n in range(self.o_issued, upto)]
                    self.o_issued = upto
                if self.opt.get("wopf2") == f"p{hf}": other += self.wopf2_fills()
            for f in (ld, ex, other):
                if f: sc.spread(f, lo, hi)
        sc.emit()

    def sum_reads(self):
        T = self.SB[1]
        for i in range(3): self.a.ds(f"ds_read_b128 {vr(T + i*4, 4)}, v{self.V_STR} offset:{1536 + i*512}", f"sm{i}")
    def sum_eval(self):
        a = self.a
        T = self.SB[1]
        a(f"s_mov_b32 s50, {f2u(2.0 ** self.opt.get('lo', -30)):#x}\ns_mov_b32 s51, {f2u(2.0 ** 30):#x}")
        for i in range(3):
            a.wait(lg=f"sm{i}")
            b = T + i * 4
            a(f"v_add_f32 v{b}, v{b}, v{b+1}\nv_add_f32 v{b+2}, v{b+2}, v{b+3}\nv_add_f32 v{b}, v{b}, v{b+2}")
        a(f"""
        v_min3_f32 v{T+1}, v{T}, v{T+4}, v{T+8}
        v_max3_f32 v{T+2}, v{T}, v{T+4}, v{T+8}
        v_cmp_u_f32 vcc, v{T}, v{T+4}
        v_cmp_u_f32 s[0:1], v{T+8}, v{T+8}
        s_or_b64 s[0:1], vcc, s[0:1]
        v_cmp_nle_f32 vcc, s50, v{T+1}
        s_or_b64 s[0:1], vcc, s[0:1]
        v_cmp_nge_f32 vcc, s51, v{T+2}
        s_or_b64 s[0:1], vcc, s[0:1]
        """)
        for i in range(3): a(f"v_rcp_f32 v{T+12+2*i}, v{T+i*4}\nv_rcp_f32 v{T+13+2*i}, v{T+i*4}")
    def epilogue(self, item):
        a = self.a
        T = self.SB[1]
        if not self.opt.get("earlysum", 1):
            a.label(f"L_epi{item}")
            self.sum_reads(); self.sum_eval()
        a(f"""
        s_mov_b64 vcc, s[0:1]
        s_and_b64 vcc, vcc, s[{self.s_chk}:{self.s_chk+1}]
        s_cbranch_vccnz L_slow{item}
        """)
        if self.opt.get("earlysum", 1): a.label(f"L_epi{item}")
        a(f"s_mov_b64 s[{self.s_chk}:{self.s_chk+1}], -1")
        if item == 0 and self.opt.get("local", 1):
            a.wait(vm="ids")
            a(f"""v_cmp_ne_u32 vcc, s36, v{self.V_FR}
            s_cmp_eq_u64 vcc, 0
            s_cselect_b32 s61, {self.opt.get('force', 1)}, 0""")
        ef = self.seg_fills("E" if item == 0 else "e")
        if item == 1 and self.o_issued < 18:
            if not self.fl0_checked: self.flag_check(0)
            ol = [(24, lambda n=n: self.ld_o(1 + n // 6, n % 6)) for n in range(self.o_issued, 18)]
            k = self.opt.get("efirst", 0)
            ef = ef[:k] + merge(ol, ef[k:])
        for i in range(3):
            tb = self.V_P + i * 24
            if item == 0 or not self.opt.get("elast", 1):
                for _, f in ef[len(ef)*i//3:len(ef)*(i+1)//3]: f()
            else:
                n1 = self.opt.get("efirst", 0)
                for _, f in ef[n1*i//3:n1*(i+1)//3]: f()
            for r in range(16): a(f"v_accvgpr_read_b32 v{tb+r}, a{self.A_O + i*16 + r}")
            for r in range(8): a(f"v_pk_mul_f32 {vr(tb+2*r, 2)}, {vr(tb+2*r, 2)}, {vr(T+12+2*i, 2)}")
            if item == 0:
                for k in range(8): a(f"v_cvt_pk_bf16_f32 v{tb+16+k}, v{tb+2*k}, v{tb+2*k+1}")
                for k in range(8): a(f"v_accvgpr_write_b32 a{((k>>2)*3 + i)*4 + (k&3)}, v{tb+16+k}")
            else:
                for k in range(8): a(f"v_cvt_pk_bf16_f32 v{tb+16+k}, v{tb+2*k}, v{tb+2*k+1}")
                if i == 0: self.o_write(0)
        regs = [self.V_P + (f % 3) * 24 + 16 + (f // 3) * 4 for f in range(6)]
        a(f"s_add_u32 s26, s33, 0" if item == 0 else f"s_lshl_b32 s26, s24, 11\ns_add_u32 s26, s26, s33\ns_add_u32 s26, s26, 24576")
        a("s_add_u32 s50, s26, 4096")
        def stores(pol):
            for f, r in enumerate(regs):
                a(f"buffer_store_dwordx4 {vr(r, 4)}, v{self.V_L16}, s[20:23], {'s26' if f < 4 else 's50'} offen offset:{(f%4)*1024}{pol}")
        if self.opt.get("local", 1):
            far = a.newlabel("L_far"); done = a.newlabel("L_std")
            a(f"s_cmp_eq_u32 s61, 0\ns_cbranch_scc1 {far}")
            stores(self.opt.get("lspol", ""))
            a(f"s_branch {done}")
            a.label(far)
            stores(" sc1")
            a.label(done)
        else:
            stores(" sc1")
        a.vmq += [f"O{item}"] * len(regs)
        if item == 1:
            if self.opt.get("elast", 1): self.e_rest = ef[self.opt.get("efirst", 0):]
    s_chk = 38

    def item(self, item):
        for g in range(4): self.qk_tile(item, g)
        if item == 1:
            if not self.fl0_done:
                self.a.wait(vm="O0"); self.flag_store(0); self.fl0_done = True
            self.p3_setup()
        self.stamp()
        self.pv(item)
        if item == 1: self.in3 = True
        self.stamp()
        self.a("s_barrier")
        self.epilogue(item)
        self.stamp()

    def slow(self, item):
        a = self.a
        a.vmq = []; a.lgq = []
        S = lambda g, i: 64 + (g * 3 + i) * 16
        F = self.V_F; M = [29, 30, 31]; MC = [20, 21, 1]; L = [60, 61, 62]
        a.label(f"L_slow{item}")
        a("s_waitcnt vmcnt(0) lgkmcnt(0)\ns_barrier")
        a(f"s_mov_b64 s[{self.s_chk}:{self.s_chk+1}], 0")
        if item == 1:
            self.lane_parts(33); self.ksrc_addrs(33); self.ka_addrs(33, "s28")
        for g in range(4):
            for i in range(8): self.ld_piece(item * 8 + g, i, slot=g)
        a.wait(vm="all")
        for g in range(4):
            for j in range(8): a.ds(f"ds_read_b128 {vr(F + j*4, 4)}, v{self.V_KA+j} offset:{g*8192}", "kf")
            a.wait(lg="all")
            for j in range(8):
                for i in range(3):
                    d = vr(S(g, i), 16)
                    a(f"{MF32} {d}, {vr(F + j*4, 4)}, {ar(item*96 + (j*3+i)*4, 4)}, {d if j else 0}")
        for g in range(4):
            for i in range(8): self.ld_piece(item * 8 + 4 + g, i, slot=g)
        for i in range(3):
            a(f"v_mov_b32 v{M[i]}, v{S(0, i)}")
            for g in range(4):
                for k in range(8): a(f"v_max3_f32 v{M[i]}, v{M[i]}, v{S(g, i)+2*k}, v{S(g, i)+2*k+1}")
        for i in range(3): a(f"v_mov_b32 v{F+i}, v{M[i]}")
        for i in range(3): a(f"v_permlane32_swap_b32 v{M[i]}, v{F+i}")
        for i in range(3): a(f"v_max_f32 v{M[i]}, v{M[i]}, v{F+i}")
        for i in range(3): a.ds(f"ds_write_b32 v{self.V_STW}, v{M[i]} offset:{i*512}", "st")
        a.wait(lg="all")
        a("s_barrier")
        for i in range(3): a.ds(f"ds_read_b128 {vr(F + 4 + i*4, 4)}, v{self.V_STR} offset:{i*512}", "sm")
        a.wait(lg="all")
        for i in range(3):
            b = F + 4 + i * 4
            a(f"v_max3_f32 v{b}, v{b}, v{b+1}, v{b+2}\nv_max_f32 v{MC[i]}, v{b}, v{b+3}\nv_mov_b32 v{L[i]}, 0")
        for g in range(4):
            for i in range(3):
                s = S(g, i)
                for r in range(16): a(f"v_sub_f32 v{s+r}, v{s+r}, v{MC[i]}")
                for r in range(16): a(f"v_exp_f32 v{s+r}, v{s+r}")
                for k in range(8):
                    a(f"v_add_f32 v{L[i]}, v{L[i]}, v{s+2*k}\nv_add_f32 v{L[i]}, v{L[i]}, v{s+2*k+1}")
                    a(f"v_cvt_pk_bf16_f32 v{s+k}, v{s+2*k}, v{s+2*k+1}")
        for i in range(3): a(f"v_mov_b32 v{F+i}, v{L[i]}")
        for i in range(3): a(f"v_permlane32_swap_b32 v{L[i]}, v{F+i}")
        for i in range(3): a(f"v_add_f32 v{L[i]}, v{L[i]}, v{F+i}")
        for i in range(3): a.ds(f"ds_write_b32 v{self.V_STW}, v{L[i]} offset:{1536 + i*512}", "st")
        a.wait(vm="all")
        for g in range(4):
            for s in range(2):
                for i in range(3):
                    a.ds(f"ds_write_b128 v{self.V_PW}, {vr(S(g, i) + 4*s, 4)} offset:{s*12288 + i*1024}", "pw")
            a.wait(lg="all")
            a("s_barrier")
            for s in range(2):
                for wsrc in range(4):
                    self.pv_reads(g, s, wsrc, 0)
                    a.wait(lg="all")
                    for i in range(3):
                        d = ar(self.A_O + i * 16, 16)
                        a(f"{MF32} {d}, {vr(F, 4)}, {vr(F + 4 + 4*i, 4)}, {d if (g or s or wsrc) else 0}")
            a("s_barrier")
        if item == 1: self.p3_addrs(48); self.p3_flagaddr(); a.cache = {}
        for idx in range(item * 8 + 8, item * 8 + 11):
            for _, f in self.tile_fills(idx): f()
        if self.opt.get("earlysum", 1):
            self.sum_reads(); self.sum_eval()
        if item == 0: a(f"v_not_b32 v{self.V_FR}, s36")
        a("s_waitcnt vmcnt(0)")
        a.nop(16)
        a(f"s_branch L_epi{item}")

    def p3_flagaddr(self):
        self.a(f"""
        s_and_b32 s30, s31, {(1 << 32) - 16:#x}
        v_and_b32 v{self.V_FL}, 0x30, v{self.V_L16}
        v_lshrrev_b32 v{self.V_FL}, 2, v{self.V_FL}
        v_add_u32 v{self.V_FL}, s30, v{self.V_FL}
        """)
    def p3_setup(self):
        a = self.a
        xh2 = self.opt.get('map', 'xh2') == 'xh2'
        a(f"""
        s_lshr_b32 s50, s34, 3
        s_and_b32 s51, s3, 3
        s_lshl_b32 s60, s35, 3
        s_add_u32 s60, s60, s37
        """)
        a(f"""
        s_lshl_b32 s42, s60, 2
        s_add_u32 s42, s42, s50
        s_mul_i32 s42, s42, {16*8192}
        s_lshl_b32 s63, s24, 11
        s_add_u32 s42, s42, s63
        """)
        a(f"""
        s_mul_i32 s43, s37, 43
        s_lshr_b32 s43, s43, 7
        s_mul_i32 s43, s43, 3
        s_sub_u32 s43, s37, s43
        """)
        for j in range(4):
            if j == 0: a("s_mov_b32 s26, s50")
            else:
                if self.opt.get("rot3", 1):
                    a(f"""s_add_u32 s26, s43, {j-1}
                    s_cmp_ge_u32 s26, 3
                    s_cselect_b32 s63, 3, 0
                    s_sub_u32 s26, s26, s63
                    s_add_u32 s26, s26, 1""")
                else: a(f"s_mov_b32 s26, {j}")
                a("s_add_u32 s26, s26, s50\ns_and_b32 s26, s26, 3")
            if xh2: a("s_lshl_b32 s26, s26, 3\ns_lshl_b32 s63, s51, 1\ns_add_u32 s26, s26, s63")
            else: a("s_lshl_b32 s26, s26, 1\ns_lshl_b32 s63, s51, 3\ns_add_u32 s26, s26, s63")
            a(f"""s_lshl_b32 s{56+j}, s26, 17
            s_lshl_b32 s63, s24, 15
            s_add_u32 s{56+j}, s{56+j}, s63
            s_lshl_b32 s63, s50, 8
            s_add_u32 s{56+j}, s{56+j}, s63
            s_lshl_b32 s63, s60, 5
            s_add_u32 s26, s26, s63
            s_mul_i32 s{52+j}, s26, 28672
            s_mul_i32 s63, s24, 6144
            s_add_u32 s{52+j}, s{52+j}, s63""")
        a(f"""
        s_mul_i32 s27, s37, 96
        s_lshl_b32 s63, s51, 3
        s_add_u32 s27, s27, s63
        s_lshl_b32 s27, s27, 11
        s_lshl_b32 s63, s35, 10
        s_add_u32 s27, s27, s63
        s_lshl_b32 s63, s50, 8
        s_add_u32 s27, s27, s63
        s_and_b32 s63, s24, 1
        s_lshl_b32 s63, s63, 7
        s_add_u32 s27, s27, s63
        s_lshr_b32 s63, s24, 1
        s_lshl_b32 s63, s63, 6
        s_add_u32 s27, s27, s63
        s_mov_b32 s8, s44
        s_mov_b32 s9, s45
        s_mov_b32 s10, 1572864
        s_mov_b32 s36, s51
        """)
        self.p3_addrs(48)
    def p3_addrs(self, t):
        a = self.a
        self.lane_parts(t)
        a(f"""
        v_lshlrev_b32 v{t+5}, 2, v{t+1}
        v_xor_b32 v{t+5}, v{t+2}, v{t+5}
        v_lshlrev_b32 v{t+5}, 4, v{t+5}
        v_lshl_add_u32 v{self.V_WO}, v{t+1}, 10, v{t+5}
        v_add_u32 v{self.V_WO+1}, 3072, v{self.V_WO}
        v_add_u32 v{self.V_WO+2}, 6144, v{self.V_WO}
        v_add_u32 v{self.V_WO+3}, 9216, v{self.V_WO}
        v_lshlrev_b32 v{t+5}, 1, v{t+4}
        v_lshl_add_u32 v{self.V_OUT}, v{t+3}, 13, v{t+5}
        v_add_u32 v{self.V_LIN}, s28, v{self.V_L16}
        v_add_u32 v31, 0x10000, v{self.V_L16}
        s_lshl_b32 s26, s24, 11
        v_add_u32 v19, s26, v{self.V_L16}
        s_xor_b32 s50, s24, 1
        s_mul_i32 s26, s50, 3072
        v_add_u32 v{self.V_PO}, s26, v{self.V_PR}
        s_lshl_b32 s26, s50, 15
        v_add_u32 v{self.V_PO+1}, s26, v{self.V_L16}
        s_xor_b32 s26, s28, 0x10000
        v_add_u32 v31, s26, v{self.V_L16}
        """)
        for src in range(2):
            for ntl in range(2):
                a(f"""s_and_b32 s26, s24, 1
                s_lshl_b32 s26, s26, 1
                s_lshr_b32 s50, s24, 1
                s_xor_b32 s50, s50, {ntl}
                s_add_u32 s26, s26, s50
                s_xor_b32 s26, s26, s24
                s_lshl_b32 s26, s26, 6
                v_xor_b32 v{t+5}, s26, v{self.V_VA}
                s_xor_b32 s26, s28, {src << 15}
                v_add_u32 v{self.V_TR + src*2 + ntl}, s26, v{t+5}""")
    def nonce_check(self):
        a = self.a
        lab = a.newlabel("L_np"); ok = a.newlabel("L_nok")
        a(f"""
        s_mov_b32 s63, 0
        s_cmp_lg_u32 s62, 0
        s_cbranch_scc1 {ok}
        """)
        a.label(lab)
        a(f"""
        v_mov_b32 v20, 0
        global_load_dword v21, v20, s[46:47] sc1
        s_waitcnt vmcnt(0)
        v_readfirstlane_b32 s62, v21
        s_add_u32 s63, s63, 1
        s_cmp_ge_u32 s63, {SPIN_MAX}
        s_cbranch_scc1 {ok}
        s_cmp_eq_u32 s62, 0
        s_cbranch_scc1 {lab}
        """)
        a.label(ok)
        a(f"""
        s_lshl_b32 s31, s35, 3
        s_add_u32 s31, s31, s37
        s_lshl_b32 s31, s31, 2
        s_and_b32 s60, s3, 3
        s_add_u32 s31, s31, s60
        s_lshl_b32 s31, s31, 2
        s_add_u32 s31, s31, s24
        s_lshl_b32 s31, s31, 2
        s_lshr_b32 s60, s34, 3
        s_add_u32 s31, s31, s60
        s_lshl_b32 s31, s31, 2
        s_add_u32 s31, s31, {FLAG_OFF}
        """)
    def flag_store(self, rnd):
        a = self.a
        assert f"O{rnd}" not in a.vmq
        a(f"v_mov_b32 v20, s31\nv_mov_b32 v21, s62")
        a.vm(f"global_store_dword v20, v21, s[48:49] offset:{-4096*rnd} sc1", f"fs{rnd}")
    def fl_ins(self, rnd):
        return f"global_load_dword v{self.V_FR}, v{self.V_FL}, s[48:49] offset:{-4096*rnd} sc1"
    def flag_load(self, rnd):
        self.a.vm(self.fl_ins(rnd), f"fl{rnd}")
    def flag_check(self, rnd):
        a = self.a
        a.wait(vm=f"fl{rnd}")
        lab = a.newlabel("L_poll"); ok = a.newlabel("L_pok")
        a(f"""
        v_cmp_ne_u32 vcc, s62, v{self.V_FR}
        s_mov_b32 s63, 0
        s_cbranch_vccz {ok}
        """)
        a.label(lab)
        a(f"""
        {self.fl_ins(rnd)}
        s_add_u32 s63, s63, 1
        s_waitcnt vmcnt(0)
        v_cmp_ne_u32 vcc, s62, v{self.V_FR}
        s_cmp_ge_u32 s63, {SPIN_MAX}
        s_cbranch_scc1 {ok}
        s_cbranch_vccnz {lab}
        """)
        a.label(ok)
    def p3_buf(self, n):
        return ("a", 96 + (n % (self.opt.get("p3d", 2) + 1)) * 16)
    def wo_slot(self, h): return self.slot(12 + h % 3)
    def ld_wo(self, h, i):
        a = self.a
        a.sset("m0", "s28", self.wo_slot(h)*8192 + (i>>2)*4096); a.sset("s43", f"s{56 + (h&3)}", (h>>2)*131072 + (i>>2)*16384)
        a.vm(f"buffer_load_dwordx4 v{self.V_WO+(i&3)}, s[4:7], s43 offen offset:{(i&3)*1024}{self.opt.get('wopol','')} lds", f"w{h}")
    def o_reg(self, h, f):
        if h == 4: return vr(self.V_P + (f % 3) * 24 + 16 + (f // 3) * 4, 4)
        if h < 4: return ar(h * 24 + f * 4, 4)
        return vr(self.o2base((h - 5) * 8 + f), 4)
    def o2base(self, q):
        return ([32 + 4*k for k in range(8)] + [112 + 4*k for k in range(16)])[q]
    def ld_o(self, h, f):
        a = self.a
        if h < 5:
            a.sset("s30", f"s{52 + (h&3)}", (f//4)*4096)
            a.vm(f"buffer_load_dwordx4 {self.o_reg(h, f)}, v{self.V_L16}, s[20:23], s30 offen offset:{(f%4)*1024}{self.opt.get('olpol', ' sc1')}", f"o{h}")
        else:
            a.sset("s30", f"s{52 + (h&3)}", 24576 + (f//4)*4096)
            a.vm(f"buffer_load_dwordx4 {vr(self.o2base((h-5)*8 + f), 4)}, v19, s[20:23], s30 offen offset:{(f%4)*1024}{self.opt.get('olpol', ' sc1')}", f"o{h}")
    def o_check(self, h):
        a = self.a
        a.wait(vm=f"o{h}")
        if self.in3 and "O1" not in a.vmq and not self.fl1_done and h >= 1:
            self.fl1_done = True
            self.flag_store(1)
    def o_write1(self, h, f):
        a = self.a
        if h % 2 == 0: a.ds(f"ds_write_b128 v{self.V_PW}, {self.o_reg(h, f)} offset:{(f//3)*12288 + (f%3)*1024}", "ow")
        else: a.ds(f"ds_write_b128 v{self.V_LIN}, {self.o_reg(h, f)} offset:{self.slot(15)*8192 + f*1024}", "ow")
    def o_write(self, h):
        self.o_check(h)
        for f in range(6): self.o_write1(h, f)
    ACC3 = [[64, 80, 96], [184, 208, 240]]
    def phase3(self):
        a = self.a
        ACC = 64
        D = self.opt.get("p3d", 3)
        o2at = self.opt.get("o2at", 3)
        sc = Sched()
        def groups(h):
            g = [(src, s, ntl) for src in range(2) for s in range(2) for ntl in range(2)]
            return g if h < 7 else sorted(g, key=lambda x: -x[2])
        first = {0: True, 1: True}
        for h in range(8):
            for g, (src, s, ntl) in enumerate(groups(h)):
                n = h * 8 + g
                for i in range(3):
                    def m(n=n, i=i, h=h, src=src, s=s, ntl=ntl, z=first[ntl]):
                        a.wait(lg=[f"r{n}"] + ([f"po{h}_{s*3+i}"] if src else []))
                        d = vr(self.ACC3[ntl][i], 16)
                        A = ar(96 + (h & 1) * 24 + (s * 3 + i) * 4, 4) if src else self.o_reg(h, s * 3 + i)
                        a(f"{MF32} {d}, {A}, {ar(144 + (n % (D + 1)) * 4, 4)}, {0 if z else d}")
                    sc.main(m)
                first[ntl] = False
        for h in range(8):
            def sync(h=h):
                a.wait(vm=f"w{h}", lg="all")
                a("s_barrier")
                if h in self.opt.get("p3st", (5,)): self.stamp()
            bar = -1.0 if h == 0 else (8 * h - D) * 3 - 0.05
            sc.at(bar, sync)
            for g, (src, s, ntl) in enumerate(groups(h)):
                n = h * 8 + g
                for u in range(2):
                    f = lambda n=n, h=h, src=src, s=s, ntl=ntl, u=u: a.ds(
                        f"ds_read_b64_tr_b16 {ar(144 + (n % (D + 1)) * 4 + 2*u, 2)}, v{self.V_TR + src*2 + ntl} offset:{self.wo_slot(h)*8192 + (16*s + 8*u)*256}", f"r{n}")
                    if n < D: sc.at(-0.9 + 0.1 * n + 0.01 * u, f)
                    elif g == 0: sc.at((n - D) * 3 + [-0.04, 0.1][u], f)
                    else: sc.at((n - D) * 3 + [0.1, 1.1][u], f)
            lo = max(bar, 0) + 0.5; hi = (8 * (h + 1) - D) * 3 - 0.1
            for f in range(6):
                off = (f // 3) * 12288 + (f % 3) * 1024 if h % 2 == 0 else self.slot(15) * 8192 + f * 1024
                sc.at(lo + 1.7 + (1.0 if h < 7 else 0.5) * f, lambda f=f, h=h, off=off: a.ds(
                    f"ds_read_b128 {ar(96 + (h & 1) * 24 + f * 4, 4)}, v{self.V_PO + (h & 1)} offset:{off}", f"po{h}_{f}"))
            if h + 1 < 8:
                ow = lo + (self.opt.get("owat", 8) if h < 4 else self.opt.get("owat2", 8))
                ow = min(ow, hi - 5)
                sp = min(2.0, (hi - 1.0 - ow) / 6)
                sc.at(ow, lambda h=h: self.o_check(h + 1))
                for f in range(6): sc.at(ow + 0.1 + sp * f, lambda h=h, f=f: self.o_write1(h + 1, f))
            fills = []
            if h == 0: fills += self.e_rest
            if h >= 1 and h + 2 < 8: fills += [(1, lambda i=i, h=h: self.ld_wo(h + 2, i)) for i in range(8)]
            o2 = []
            for hh, st in zip((5, 6, 7), self.opt.get("o2steps", (o2at, o2at + 1, o2at + 2))):
                if st == h: o2 += [(1, lambda f=f, hh=hh: self.ld_o(hh, f)) for f in range(6)]
            if h == self.opt.get("fl1at", 2): sc.at(lo + self.opt.get("fl1pos", 12), lambda: self.flag_load(1))
            if h == o2at:
                cp = lo + self.opt.get("chk1pos", 10)
                sc.at(cp, lambda: self.flag_check(1))
                if fills: sc.spread(fills, lo, cp - 0.1)
                sc.spread(o2, cp + 0.1, hi)
                continue
            fills = fills + o2 if self.opt.get("wofirst", 1) else o2 + fills
            if fills: sc.spread(fills, lo, hi)
        red = lambda k: (self.wo_slot(5) * 8192 + k * 1024) if k < 8 else (self.wo_slot(6) * 8192 + (k - 8) * 1024)
        for k in range(12):
            sc.at(56 * 3 + 12 + 3.2 + 0.7 * k, lambda k=k: a.ds(f"ds_write_b128 v{self.V_LIN}, {vr(self.ACC3[1][k >> 2] + (k & 3) * 4, 4)} offset:{red(k)}", "rw"))
        def prep():
            a(f"""
            s_mov_b32 s16, s48
            s_mov_b32 s17, s49
            s_add_u32 s16, s16, {PART_OFF}
            s_addc_u32 s17, s17, 0
            s_mov_b32 s18, {PART_BYTES}
            s_lshl_b32 s50, s36, 13
            s_add_u32 s50, s50, s42
            s_lshl_b32 s51, s36, 15
            s_add_u32 s51, s51, s42
            """)
            for j in range(1, 4):
                a(f"s_add_u32 s{56+j}, s36, {j}\ns_and_b32 s{56+j}, s{56+j}, 3\ns_lshl_b32 s{56+j}, s{56+j}, 13\ns_add_u32 s{56+j}, s{56+j}, s51")
        sc.at(64 * 3 - 12, prep)
        for d in range(4):
            for q in range(2): sc.at(64 * 3 - 10 + d * 2 + q, lambda d=d, q=q: a(f"v_mov_b32 v{32 + d*8 + q*4 + 3}, s62"))
        sc.emit()
        assert self.fl1_done
        a.wait(lg="all")
        a("s_barrier")
        for k in range(12): a.ds(f"ds_read_b128 {vr(112 + k*4, 4)}, v31 offset:{red(k)}", f"rr{k>>2}")
        for i in range(3):
            a.wait(lg=f"rr{i}")
            for k in range(8): a(f"v_pk_add_f32 {vr(ACC + i*16 + 2*k, 2)}, {vr(ACC + i*16 + 2*k, 2)}, {vr(112 + i*16 + 2*k, 2)}")
        self.stamp()
        T = 160; R = 112
        GD = lambda d: 32 + d * 8
        for d in range(4):
            pass
        done = a.newlabel("L_own")
        for d in range(4):
            own = a.newlabel("L_d"); nxt = a.newlabel("L_n")
            a(f"s_cmp_eq_u32 s36, {d}\ns_cbranch_scc1 {own}")
            for k in range(6):
                src = ACC + (k >> 1) * 16 + d * 4 + (k & 1) * 2
                a(f"v_cvt_pk_bf16_f32 v{GD(d) + (k//3)*4 + k%3}, v{src}, v{src+1}")
            a(f"s_add_u32 s26, s50, {d*32768}")
            for q in range(2):
                a(f"buffer_store_dwordx4 {vr(GD(d) + q*4, 4)}, v{self.V_L16}, s[16:19], s26 offen offset:{q*1024} sc1")
            a(f"s_branch {nxt}")
            a.label(own)
            for e in range(12): a(f"v_mov_b32 v{T+e}, v{ACC + (e>>2)*16 + d*4 + (e&3)}")
            a.label(nxt)
        self.stamp()
        def poll(Rb):
            for j in range(1, 4):
                for q in range(2):
                    a(f"buffer_load_dwordx4 {vr(Rb + (j-1)*8 + q*4, 4)}, v{self.V_L16}, s[16:19], s{56+j} offen offset:{q*1024} sc1")
        def check(Rb):
            for g in range(6): a(f"v_xor_b32 v{140+g}, s62, v{Rb + g*4 + 3}")
            a(f"""
            v_or3_b32 v20, v140, v141, v142
            v_or3_b32 v21, v143, v144, v145
            v_or_b32 v20, v20, v21
            v_cmp_ne_u32 vcc, 0, v20
            """)
        lab = a.newlabel("L_pp"); ok = a.newlabel("L_pok"); okb = a.newlabel("L_pokb")
        R2 = 228
        if self.opt.get("poll2", 0):
            a("s_mov_b32 s63, 0")
            poll(R)
            a.label(lab)
            a(f"s_sleep {self.opt.get('psleep', 2)}")
            poll(R2)
            a("s_add_u32 s63, s63, 1\ns_waitcnt vmcnt(6)")
            check(R)
            a(f"s_cbranch_vccz {ok}\ns_sleep {self.opt.get('psleep', 2)}")
            poll(R)
            a("s_waitcnt vmcnt(6)")
            check(R2)
            a(f"s_cbranch_vccz {okb}\ns_cmp_lt_u32 s63, {SPIN_MAX}\ns_cbranch_scc1 {lab}")
            a.label(okb)
            a("s_waitcnt vmcnt(0)")
            a.label(ok)
        else:
            a("s_mov_b32 s63, 0")
            a.label(lab)
            if self.opt.get("psleep", 0): a(f"s_sleep {self.opt['psleep']}")
            poll(R)
            a("s_add_u32 s63, s63, 1\ns_waitcnt vmcnt(0)")
            check(R)
            a(f"s_cmp_ge_u32 s63, {SPIN_MAX}\ns_cbranch_scc1 {ok}\ns_cbranch_vccnz {lab}")
            a.label(ok)
        a.vmq = []
        self.stamp()
        for j in range(3):
            for k in range(6):
                src = R + j * 8 + (k // 3) * 4 + k % 3
                t = T + 12 + 2 * (k & 1)
                a(f"""v_lshlrev_b32 v{t}, 16, v{src}
                v_and_b32 v{t+1}, 0xffff0000, v{src}
                v_pk_add_f32 {vr(T+2*k, 2)}, {vr(T+2*k, 2)}, {vr(t, 2)}""")
        for k in range(6): a(f"v_cvt_pk_bf16_f32 v{T+48+k}, v{T+2*k}, v{T+2*k+1}")
        for i in range(3):
            for k in range(2):
                a(f"s_add_u32 s26, s27, {(i*32 + 2*k)*2048}")
                a.vm(f"buffer_store_short v{T+48+i*2+k}, v{self.V_OUT}, s[8:11], s26 offen", "st")
                a.vm(f"buffer_store_short_d16_hi v{T+48+i*2+k}, v{self.V_OUT}, s[8:11], s26 offen offset:2048", "st")

    def finish(self):
        a = self.a
        if self.stamps:
            a("s_waitcnt vmcnt(0)")
            self.final = True
            self.stamp()
            a(f"""
            s_lshl_b32 s50, s2, 2
            s_add_u32 s50, s50, s24
            s_lshl_b32 s50, s50, 7
            s_add_u32 s50, s50, {STAMP_OFF}
            v_mov_b32 v32, s50
            s_getreg_b32 s51, hwreg(HW_REG_XCC_ID)
            v_mov_b32 v33, s51
            global_store_dword v32, v33, s[48:49] offset:124
            """)
            a("s_sub_u32 s98, s100, s98\nv_mov_b32 v33, s98\nglobal_store_dword v32, v33, s[48:49] offset:120")
            for k in range(self.nst):
                a(f"v_mov_b32 v33, s{64+2*k}\nglobal_store_dword v32, v33, s[48:49] offset:{4*k}")
        a.label("L_end")
        a("s_endpgm")

    def build(self):
        c = self.a.c
        c("---- setup: ids, descriptors, per-lane addresses")
        self.setup()
        c("---- Q projection of both heads (x, wq by LDS-DMA; K of item 0 lands in registers), Q exchange through LDS")
        self.qphase()
        self.a(f"s_mov_b64 s[{self.s_chk}:{self.s_chk+1}], -1")
        c("---- item 0: S^T = K Q^T, P = 2^S, O^T = V^T P^T, row sums by MFMA, range check, publish O")
        self.item(0)
        c("---- item 1")
        self.item(1)
        c("---- output projection over the 8 heads of this workgroup's group, exchange of partial sums, store")
        self.phase3()
        self.finish()
        c("---- fallback: item 0 again with the row's true maximum subtracted")
        self.slow(0)
        c("---- fallback: item 1 again with the row's true maximum subtracted")
        self.slow(1)
        return self.a.text()

def gen(fname, stamps=False, kvpol=" nt", opt=None):
    opt = opt or {}
    k = KF(stamps, kvpol, opt)
    b1 = k.build()
    abl = opt.get("abl", "")
    if abl:
        out = []; main = True; started = False
        for l in b1.split("\n"):
            t = l.strip()
            if t.startswith("v_pk_mul_f32") or ("q" in abl and t.startswith("s_barrier")): started = True
            if t.startswith("s_getreg_b32"): started = False
            if "M" in abl and t.startswith("v_mfma"): continue
            if "M" in abl and t.startswith("s_cbranch_vccnz L_slow"): continue
            if started:
                if "m" in abl and (t.startswith("buffer_") or t.startswith("global_")): continue
                if "m" in abl and t.startswith("s_cmp_ge_u32 s63"): l = "    s_cmp_ge_u32 s63, 0"
                if "m" in abl and t.startswith("s_cbranch_vccnz L_slow"): continue
                if "e" in abl and t.startswith("v_exp_f32"): continue
                if "c" in abl and t.startswith("v_cvt_pk"): continue
                if "w" in abl and t.startswith("ds_write"): continue
                if "r" in abl and t.startswith("ds_read"): continue
                if "b" in abl and t.startswith("s_barrier"): continue
                if "s" in abl and (t.startswith("s_add_u32 m0") or t.startswith("s_add_u32 s26")): continue
            out.append(l)
        b1 = "\n".join(out)
    b1 = fix_hazards(b1, verbose=opt.get("v"))
    k1 = kernel_text(NAME + "_kernel", b1, 512, 102, 256)
    open(fname, "w").write(file_text([f"; @launch grid=(256,1,1) block=(256,1,1) lds={LDS_BYTES}"], [k1]))
    return k.nst
```

```python
import sys, math, struct
sys.path.insert(0, "gen")
from asmlib import *

def f2u(x): return struct.unpack("<I", struct.pack("<f", x))[0]
CSCALE = f2u(math.log2(math.e) / math.sqrt(128.0))

XB = 65536
PB = 131072
STM = PB + 24576
LDS_BYTES = 163840
O_BYTES = 2 * 8 * 16 * 57344
FLAG_OFF = 16 << 20
PART_OFF = 32 << 20
PART_BYTES = 2 * 8 * 4 * 4 * 4 * 4 * 2 * 1024
JUNK = STM + 3072
STAMP_OFF = 64 << 20
SPIN_MAX = 1 << 16
MF32 = "v_mfma_f32_32x32x16_bf16"
MF16 = "v_mfma_f32_16x16x32_bf16"

def interleave(mains, fills, first=0):
    tot = sum(w for w, _ in fills)
    n = len(mains)
    fi = 0; done = 0.0
    def upto(target):
        nonlocal fi, done
        while fi < len(fills) and done + fills[fi][0] * 0.5 <= target:
            fills[fi][1](); done += fills[fi][0]; fi += 1
    first = min(first, tot)
    upto(first)
    for k, m in enumerate(mains):
        m()
        upto(first + (tot - first) * (k + 1) / n)
    while fi < len(fills):
        fills[fi][1](); fi += 1

def merge(*lists):
    lists = [l for l in lists if l]
    tots = [sum(w for w, _ in l) for l in lists]
    pos = [0] * len(lists); cum = [0.0] * len(lists)
    out = []
    while any(pos[i] < len(lists[i]) for i in range(len(lists))):
        best = min((i for i in range(len(lists)) if pos[i] < len(lists[i])),
                   key=lambda i: (cum[i] + lists[i][pos[i]][0] * 0.5) / tots[i])
        out.append(lists[best][pos[best]]); cum[best] += lists[best][pos[best]][0]; pos[best] += 1
    return out

class Sched:
    def __init__(self): self.mains = []; self.ops = []
    def main(self, fn): self.mains.append(fn); return len(self.mains) - 1
    def at(self, pos, fn): self.ops.append((pos, len(self.ops), fn))
    def spread(self, fills, lo, hi):
        tot = sum(w for w, _ in fills); c = 0.0
        for w, fn in fills:
            self.at(lo + (hi - lo) * (c + w * 0.5) / tot, fn); c += w
    def emit(self):
        ops = sorted(self.ops, key=lambda o: (o[0], o[1])); k = 0
        while k < len(ops) and ops[k][0] < 0: ops[k][2](); k += 1
        for i, m in enumerate(self.mains):
            m()
            while k < len(ops) and ops[k][0] < i + 1: ops[k][2](); k += 1
        while k < len(ops): ops[k][2](); k += 1

class KF:
    V_LIN = 1; V_KSRC = 2; V_VSRC = 6; V_L16 = 7; V_WSRC = 8; V_XSRC = 9; V_QW = 10; V_ONES = 8
    V_KA = 12; V_WA = 20; V_VA = 22; V_PW = 24; V_PR = 25; V_STW = 26; V_STR = 27; V_OST = 28; V_FL = 29; V_FR = 30
    V_F = 32; SB = [64, 112]; V_P = 160; QACC = 96
    A_O = 192; A_F = 240
    V_WO = 2; V_OUT = 12; V_TR = 13; V_PO = 17

    def __init__(self, stamps=False, kvpol=" nt", opt=None):
        self.a = Asm(); self.stamps = stamps; self.kvpol = kvpol; self.nst = 0
        self.opt = opt or {}
        self.final = False
        self.q16 = self.opt.get('q16', 1)
        self.k_exact = set()
        self.nreg = self.opt.get('nreg', 4)
        self.in3 = False
        self.fl0_done = False
        self.fl1_done = False
        self.fl0_checked = False
        self.o_issued = 0
        self.e_rest = []
    def tstamp(self):
        if self.opt.get("trace") and self.nst < 14: self.stamp(True)
    def stamp(self, t=False):
        if not self.stamps: return
        if self.opt.get("trace") and not t and self.nst > 0 and not self.final: return
        if self.opt.get("only3") and self.nst > 0 and not self.in3: return
        if self.opt.get("lite") and self.nst > 0 and not self.final: return
        a = self.a
        r = 64 + 2 * self.nst; self.nst += 1
        assert r + 1 <= 93
        if self.nst - 1 in self.opt.get("clk", ()):
            q = 98 + 2 * list(self.opt["clk"]).index(self.nst - 1)
            a(f"s_memtime s[{q}:{q+1}]")
        a(f"{'s_memtime' if self.opt.get('cyc') else 's_memrealtime'} s[{r}:{r+1}]\ns_waitcnt lgkmcnt(0)"); a.lgq = []
    def S(self, g, i): return self.SB[g & 1] + i * 16
    def P(self, g, i, s): return self.V_P + g * 24 + (i * 2 + s) * 4
    def slot(self, idx): return 0 if idx < self.nreg else (idx - self.nreg + 1) % 4
    def kland(self, g, i):
        return vr(192 + g * 32 + i * 4, 4) if g < 2 else ar(192 + (g - 2) * 32 + i * 4, 4)

    def lane_parts(self, t):
        self.a(f"""
        v_mbcnt_lo_u32_b32 v{t}, -1, 0
        v_mbcnt_hi_u32_b32 v{t}, -1, v{t}
        v_lshrrev_b32 v{t+1}, 4, v{t}
        v_and_b32 v{t+2}, 15, v{t}
        v_lshrrev_b32 v{t+3}, 5, v{t}
        v_and_b32 v{t+4}, 31, v{t}
        """)
    def ksrc_addrs(self, t):
        for ii in range(4):
            self.a(f"""
            v_add_u32 v{t+6}, {4*ii}, v{t+1}
            v_xor_b32 v{t+6}, v{t+2}, v{t+6}
            v_lshlrev_b32 v{t+6}, 4, v{t+6}
            v_lshl_add_u32 v{self.V_KSRC+ii}, v{t+1}, 8, v{t+6}
            """)
    def ka_addrs(self, t, base):
        for j in range(8):
            self.a(f"""
            v_add_u32 v{t+6}, {2*j}, v{t+3}
            v_xor_b32 v{t+6}, v{t+2}, v{t+6}
            v_lshlrev_b32 v{t+6}, 4, v{t+6}
            v_lshl_add_u32 v{t+6}, v{t+4}, 8, v{t+6}
            v_add_u32 v{self.V_KA+j}, {base}, v{t+6}
            """)
    def setup(self):
        a = self.a
        a("s_cmp_ge_u32 s2, 256\ns_cbranch_scc1 L_end")
        self.stamp()
        xh2 = self.opt.get('map', 'xh2') == 'xh2'
        a(f"""
        s_and_b32 s3, s2, 7
        s_lshr_b32 s34, s2, 3
        s_lshr_b32 s35, s3, 2
        s_mul_i32 s36, s35, 40
        s_add_u32 s38, s0, s36
        s_addc_u32 s39, s1, 0
        s_load_dwordx8 s[40:47], s[38:39], 0
        s_load_dwordx2 s[48:49], s[0:1], 96
        v_lshrrev_b32 v32, 6, v0
        s_and_b32 s36, s3, 3
        v_readfirstlane_b32 s24, v32
        s_lshl_b32 s36, s36, {1 if xh2 else 3}
        s_lshr_b32 s37, s34, 3
        s_lshl_b32 s37, s37, {3 if xh2 else 1}
        s_add_u32 s36, s36, s37
        s_and_b32 s37, s34, 7
        """)
        a(f"""
        s_lshl_b32 s25, s37, 5
        s_add_u32 s25, s25, s36
        s_lshl_b32 s50, s35, 8
        s_add_u32 s50, s50, s25
        s_mul_i32 s33, s50, 28672
        s_mul_i32 s50, s24, 6144
        s_add_u32 s33, s33, s50
        s_lshl_b32 s25, s25, 17
        s_lshl_b32 s50, s24, 13
        s_add_u32 s25, s25, s50
        s_lshl_b32 s28, s24, 15
        s_mul_i32 s30, s37, 98304
        s_lshl_b32 s31, s36, 8
        s_lshl_b32 s50, s24, 7
        s_add_u32 s31, s31, s50
        s_lshl_b32 s32, s24, 14
        s_lshl_b32 s27, s24, 10
        s_add_u32 s27, s27, {XB}
        s_lshr_b32 s50, s34, 3
        s_add_u32 s50, s50, s37
        """)
        for kc in range(4):
            if self.opt.get("rot", 1): a(f"s_add_u32 s51, s50, {kc}\ns_and_b32 s51, s51, 3")
            else: a(f"s_mov_b32 s51, {kc}")
            a(f"""s_lshl_b32 s{52+kc}, s51, 8
            s_add_u32 s{52+kc}, s{52+kc}, s30
            s_lshl_b32 s{56+kc}, s51, 20
            s_add_u32 s{56+kc}, s{56+kc}, s31""")
        a(self.opt.get("trot", "s_mov_b32 s50, 0"))
        for g in range(4):
            a(f"s_add_u32 s51, s50, {g}\ns_and_b32 s51, s51, 3\ns_lshl_b32 s51, s51, 15\ns_add_u32 s{94+g}, s25, s51")
        self.lane_parts(33)
        a(f"""
        v_lshlrev_b32 v{self.V_L16}, 4, v33
        s_lshl_b32 s50, s24, 2
        v_add_u32 v39, s50, v34
        v_xor_b32 v40, v35, v39
        v_lshlrev_b32 v40, 4, v40
        v_lshl_add_u32 v{self.V_XSRC}, v39, 10, v40
        v_lshrrev_b32 v39, 3, v33
        v_and_b32 v40, 7, v33
        v_and_b32 v41, 1, v34
        v_lshlrev_b32 v41, {1 if self.q16 else 2}, v41
        v_xor_b32 v40, v40, v41
        v_lshlrev_b32 v40, 4, v40
        v_lshl_add_u32 v{self.V_WSRC}, v39, 13, v40
        v_xor_b32 v76, 64, v{self.V_WSRC}
        """)
        self.ksrc_addrs(33)
        a("v_lshlrev_b32 v28, 7, v33")
        if self.opt.get("codepf", 0):
            a(f"""s_getpc_b64 s[100:101]
            s_lshl_b32 s50, s34, 11
            v_and_b32 v39, 0x780, v28
            v_add_u32 v39, s50, v39
            v_min_u32 v39, {self.opt["codepf"]}, v39
            global_load_dword v0, v39, s[100:101]""")
        a(f"""
        s_mov_b32 s6, 786432
        s_mov_b32 s7, 0x20000
        s_mov_b32 s10, 4194304
        s_mov_b32 s11, 0x20000
        s_mov_b32 s14, 33554432
        s_mov_b32 s15, 0x20000
        s_mov_b32 s18, 33554432
        s_mov_b32 s19, 0x20000
        s_mov_b32 s22, {O_BYTES}
        s_mov_b32 s23, 0x20000
        s_waitcnt lgkmcnt(0)
        s_mov_b64 s[4:5], s[40:41]
        s_mov_b64 s[8:9], s[46:47]
        s_mov_b64 s[12:13], s[42:43]
        s_mov_b64 s[16:17], s[44:45]
        s_mov_b64 s[20:21], s[48:49]
        s_load_dwordx2 s[40:41], s[38:39], 32
        s_load_dwordx4 s[44:47], s[0:1], 80
        """)
    def setup2(self):
        a = self.a
        a(f"""
        v_lshlrev_b32 v39, 2, v34
        v_xor_b32 v39, v35, v39
        v_lshlrev_b32 v39, 4, v39
        v_lshl_add_u32 v{self.V_VSRC}, v34, 8, v39
        v_add_u32 v{self.V_LIN}, s28, v{self.V_L16}
        """)
        self.ka_addrs(33, XB)
        a(f"""
        v_lshrrev_b32 v39, 2, v35
        v_lshl_add_u32 v40, v36, 3, v39
        v_lshlrev_b32 v40, 7, v40
        v_lshrrev_b32 v41, 3, v35
        v_lshl_add_u32 v40, v41, 6, v40
        v_and_b32 v41, 1, v34
        v_lshl_add_u32 v40, v41, 5, v40
        v_and_b32 v42, 3, v35
        v_lshl_add_u32 v40, v42, 3, v40
        v_add_u32 v{self.V_WA}, s32, v40
        v_xor_b32 v{self.V_WA+1}, 64, v{self.V_WA}
        v_lshl_add_u32 v40, v36, 2, v39
        v_lshlrev_b32 v40, 8, v40
        v_xor_b32 v43, s24, v39
        v_lshl_add_u32 v40, v43, 6, v40
        v_lshl_add_u32 v40, v41, 5, v40
        v_lshl_add_u32 v{self.V_VA}, v42, 3, v40
        v_add_u32 v{self.V_VA+1}, 0x10000, v{self.V_VA}
        s_mul_i32 s50, s24, 3072
        s_add_u32 s50, s50, {PB}
        v_add_u32 v{self.V_PW}, s50, v{self.V_L16}
        v_add_u32 v{self.V_PR}, {PB}, v{self.V_L16}
        v_lshlrev_b32 v40, 4, v37
        v_add_u32 v{self.V_STR}, {STM}, v40
        s_lshl_b32 s50, s24, 2
        v_add_u32 v{self.V_STW}, s50, v{self.V_STR}
        v_lshlrev_b32 v40, 4, v37
        v_lshl_add_u32 v40, v36, 3, v40
        s_mul_i32 s50, s24, 12288
        s_add_u32 s50, s50, {PB - 24576}
        s_add_u32 s51, s50, 8192
        s_add_u32 s26, s28, 65536
        s_cmp_lt_u32 s24, 2
        s_cselect_b32 s50, s28, s50
        s_cselect_b32 s51, s26, s51
        v_add_u32 v{self.V_QW}, s50, v40
        v_add_u32 v11, s51, v40
        v_add_u32 v31, 0x10000, v{self.V_L16}
        """)
        if self.q16:
            a(f"""
            v_lshrrev_b32 v85, 2, v35
            v_lshl_add_u32 v85, v34, 3, v85
            v_lshlrev_b32 v85, 7, v85
            v_and_b32 v86, 3, v35
            v_lshl_add_u32 v85, v86, 3, v85
            v_add_u32 v85, s32, v85
            v_lshrrev_b32 v86, 3, v35
            v_and_b32 v87, 1, v34
            v_lshl_add_u32 v86, v87, 1, v86
            """)
            for nt in range(4): a(f"v_xor_b32 v87, {nt}, v86\nv_lshl_add_u32 v{77+nt}, v87, 5, v85")
            for j in range(4):
                a(f"""v_add_u32 v87, {4*j}, v34
                v_xor_b32 v87, v35, v87
                v_lshlrev_b32 v87, 4, v87
                v_lshl_add_u32 v87, v35, 8, v87
                v_add_u32 v{81+j}, {XB}, v87""")
            a(f"""
            v_lshlrev_b32 v87, 4, v35
            v_lshl_add_u32 v87, v36, 9, v87
            v_and_b32 v86, 1, v34
            v_lshl_add_u32 v87, v86, 3, v87
            v_add_u32 v{self.V_QW}, s50, v87
            v_add_u32 v11, s51, v87
            """)
        a(f"""
        s_mov_b32 s42, {CSCALE:#x}
        s_mov_b32 s43, {CSCALE:#x}
        s_waitcnt lgkmcnt(0)
        """)
        lab = a.newlabel("L_nonce")
        a(f"""s_or_b32 s50, s2, s24
        s_cmp_lg_u32 s50, 0
        s_cbranch_scc1 {lab}
        s_memrealtime s[50:51]
        s_waitcnt lgkmcnt(0)
        s_or_b32 s50, s50, 1
        v_mov_b32 v39, 0
        v_mov_b32 v40, s50
        global_store_dword v39, v40, s[46:47] sc1""")
        a.label(lab)

    def ld_x(self, kc, m):
        a = self.a
        a.sset("m0", "s27", kc*24576 + m*4096); a(f"s_add_u32 s26, s{52+kc}, {m*16384}")
        a.vm(f"buffer_load_dwordx4 v{self.V_XSRC}, s[4:7], s26 offen lds", f"x{kc}")
    def ld_wq(self, ks, e):
        a = self.a
        a.sset("m0", "s32", (ks%8)*2048 + e*1024); a(f"s_add_u32 s26, s{56+(ks>>3)}, {((ks&7)*16 + e*8)*8192}")
        a.vm(f"buffer_load_dwordx4 v{76 if (self.q16 and e) else self.V_WSRC}, s[8:11], s26 offen lds", f"wq{ks}")
    def ld_kreg(self, n):
        a = self.a
        g, i = n >> 3, n & 7
        a.sset("s60", f"s{94+g}", (i>>2)*4096)
        a.vm(f"buffer_load_dwordx4 {self.kland(g, i)}, v{self.V_KSRC+(i&3)}, s[12:15], s60 offen offset:{(i&3)*1024}{self.kvpol}", f"T{g}")
    def ld_piece(self, idx, i, slot=None):
        a = self.a
        item, kind, g = idx >> 3, (idx >> 2) & 1, idx & 3
        if slot is None: slot = self.slot(idx)
        srd = "s[16:19]" if kind else "s[12:15]"
        a.sset("m0", "s28", slot*8192 + (i>>2)*4096); a.sset("s29", f"s{94+g}", item*131072 + (i>>2)*4096)
        vo = self.V_VSRC if kind else self.V_KSRC + (i & 3)
        a.vm(f"buffer_load_dwordx4 v{vo}, {srd}, s29 offen offset:{(i&3)*1024}{self.kvpol} lds", f"T{idx}" if not (kind and i >= 4) else f"T{idx}b")
    def tile_fills(self, idx, lo=0, hi=8, w=24):
        if idx <= 15:
            return [(w, (lambda i=i: self.ld_piece(idx, i))) for i in range(lo, hi)]
        return [(w, (lambda i=i: self.ld_wo(idx - 16, i))) for i in range(lo, hi)]

    SCHED = {
        4: ["X1"], 5: ["X2", "Q0a", "Q0b"], 6: ["Q1a", "Q1b", "Q2a", "Q2b"], 7: ["P0", "P1"],
        8: ["P2", "P3"], 9: ["P4", "P5"], 10: ["P6", "P7"], 11: ["q0a", "q0b"],
        12: ["q1a", "q1b"], 13: ["q2a", "q2b"], 14: ["q3a", "q3b"], 15: ["p0", "p1"],
        16: ["p2", "p3"], 17: ["p4", "p5"], 18: ["p6", "p7"],
    }
    ORDER = (["X1", "X2"] + [f"Q{g}{h}" for g in range(4) for h in "ab"] + [f"P{k}" for k in range(8)] + ["E"] +
             [f"q{g}{h}" for g in range(4) for h in "ab"] + [f"p{k}" for k in range(8)] + ["e"])
    def earliest(self, idx):
        if idx < self.nreg + 3: return "X1"
        if idx == self.nreg + 3: return f"Q{self.nreg}a" if self.nreg < 4 else "P0"
        p = idx - 4
        if p < 3: return f"Q{p+1}a"
        if p == 3: return "P0"
        g = p & 3
        if p in (4, 5, 6): return f"P{2*g+2}"
        if p == 7: return "E"
        if p in (8, 9, 10): return f"q{g+1}a"
        if p == 11: return "p0"
        return f"p{2*g+2}"
    def seg_fills(self, seg):
        sch = dict(self.SCHED); sch.update(self.opt.get("sched", {}))
        out = []
        for idx in sorted(sch):
            segs = sch[idx]
            if seg in segs:
                assert self.ORDER.index(segs[0]) >= self.ORDER.index(self.earliest(idx)), (idx, segs)
                k = segs.index(seg); n = len(segs)
                out += self.tile_fills(idx, 8 * k // n, 8 * (k + 1) // n)
        return out

    def q_fills(self, tau):
        kskip = self.opt.get("kskip", 2)
        f = []
        if tau < 32: f += [(1, lambda e=e: self.ld_wq(tau, e)) for e in range(2)]
        c = (tau >> 3) + 1
        if c <= 3 and 1 <= (tau & 7) <= 6: f.append((1, lambda: self.ld_x(c, (tau & 7) - 1)))
        if self.opt.get("kpos"):
            if any(tau in d for d in self.opt["kpos"].values()): f.append((1, lambda: self.k_burst(tau)))
            for g, (t0, per) in self.opt.get("kspread", {}).items():
                for n in range(8):
                    if t0 + n // per == tau: f.append((1, lambda g=g, n=n: self.ld_kreg(g * 8 + n)))
                self.k_exact.add(g)
            return f
        if tau >= kskip and self.kplan < 32:
            n = self.kplan; self.kplan += 1
            f.append((1, lambda: self.ld_kreg(n)))
        return f
    def k_burst(self, tau):
        a = self.a
        ds = list(self.opt["kpos"].values())
        if all(d.get(tau) == ds[0].get(tau) for d in ds):
            for g in ds[0].get(tau, []):
                for i in range(8): self.ld_kreg(g * 8 + i)
                self.k_exact.add(g)
            return
        save = list(a.vmq)
        for ph, d in sorted(self.opt["kpos"].items()):
            if tau in d:
                lab = a.newlabel("L_kb")
                a(f"s_cmp_lg_u32 s61, {ph}\ns_cbranch_scc1 {lab}")
                for g in d[tau]:
                    for i in range(8): self.ld_kreg(g * 8 + i)
                a.label(lab)
        a.vmq = save
    def k_model(self):
        rest = [g for g in range(self.nreg) if g not in self.k_exact]
        if rest:
            q = self.a.vmq
            k = min([i for i, t in enumerate(q) if t[0] == "T"], default=len(q))
            assert all(min(self.k_exact, default=9) > g for g in rest)
            self.a.vmq = q[:k] + [f"T{g}" for g in rest for _ in range(8)] + q[k:]
    def q_read_ops(self, ks):
        a = self.a
        b = 32 + (ks & 1) * 20
        kc, jj = ks >> 3, ks & 7
        w = lambda t, u: (lambda: a.ds(f"ds_read_b64_tr_b16 {vr(b + t*4 + u*2, 2)}, v{self.V_WA+t} offset:{(ks%8)*2048 + u*512}", f"qw{ks}_{t}"))
        x = lambda i: (lambda: a.ds(f"ds_read_b128 {vr(b + 8 + i*4, 4)}, v{self.V_KA+jj} offset:{(kc&1)*24576 + i*8192}", f"qx{ks}_{i}"))
        return [w(0, 0), w(0, 1), x(0), x(1), x(2), w(1, 0), w(1, 1)]
    def qloop32(self):
        a = self.a
        for f in self.q_read_ops(0): f()
        sc = Sched()
        for ks in range(32):
            b = 32 + (ks & 1) * 20
            base = len(sc.mains)
            for t in range(2):
                for i in range(3):
                    def mf(t=t, i=i, ks=ks, b=b):
                        a.wait(lg=[f"qw{ks}_{t}", f"qx{ks}_{i}"])
                        acc = vr(self.QACC + (t * 3 + i) * 16, 16)
                        a(f"{MF32} {acc}, {vr(b + t*4, 4)}, {vr(b + 8 + i*4, 4)}, {acc if ks else 0}")
                    sc.main(mf)
            if ks + 1 < 32:
                def pre(ks=ks):
                    a.wait(vm=[f"wq{ks+1}", f"x{(ks+1)>>3}"])
                    if (ks + 1) % 8 == 0: a("s_barrier")
                    if ks + 1 == 16:
                        for j in range(8): a(f"v_add_u32 v{self.V_KA+j}, 49152, v{self.V_KA+j}")
                sc.at(base + 0.0, pre)
                for k, f in enumerate(self.q_read_ops(ks + 1)): sc.at(base + [0.1, 0.2, 1.1, 2.1, 3.1, 4.1, 4.2][k], f)
            if self.opt.get("wopf") == f"k{ks}": sc.at(base + 4.6, self.wopf_early)
            if ks == 16:
                sc.at(base + 5.0, lambda: (a("v_mov_b32 v73, 0"), a.vm("global_load_dword v72, v73, s[46:47] sc1", "nonce")))
            for k, (_, f) in enumerate(self.q_fills(ks + 7)): sc.at(base + [1.5, 2.5, 3.5, 5.5, 0.5, 4.5, 5.6, 5.7][k], f)
        sc.emit()
    def q16_reads(self, st):
        a = self.a
        b = [32, 192][0] + 0
        fb = 32 if st % 2 == 0 else None
        A = lambda nt: (ar((st & 1) * 40 + nt * 4, 4), (st & 1) * 40 + nt * 4)
        ops = []
        kc, j = st >> 2, st & 3
        def w(nt, u): return lambda: a.ds(f"ds_read_b64_tr_b16 {ar((st&1)*40 + nt*4 + 2*u, 2)}, v{77+nt} offset:{(st%4)*4096 + u*512}", f"qw{st}_{nt}")
        def x(qt): return lambda: a.ds(f"ds_read_b128 {ar((st&1)*40 + 16 + qt*4, 4)}, v{81+j} offset:{(kc&1)*24576 + qt*4096}", f"qx{st}_{qt}")
        return [w(0, 0), w(0, 1), x(0), x(1), x(2), x(3), x(4), x(5), w(1, 0), w(1, 1), w(2, 0), w(2, 1), w(3, 0), w(3, 1)]
    def qloop16(self):
        a = self.a
        a.wait(vm="wq1")
        for f in self.q16_reads(0): f()
        sc = Sched()
        for st in range(16):
            base = len(sc.mains)
            fb = (st & 1) * 40
            for nt in range(4):
                for qt in range(6):
                    def mf(nt=nt, qt=qt, st=st, fb=fb):
                        a.wait(lg=[f"qw{st}_{nt}", f"qx{st}_{qt}"])
                        acc = vr(self.QACC + (nt * 6 + qt) * 4, 4)
                        a(f"{MF16} {acc}, {ar(fb + nt*4, 4)}, {ar(fb + 16 + qt*4, 4)}, {acc if st else 0}")
                    sc.main(mf)
            if st + 1 < 16:
                def pre(st=st):
                    a.wait(vm=[f"wq{2*st+2}", f"wq{2*st+3}", f"x{(st+1)>>2}"])
                    if (st + 1) % 4 == 0: a("s_barrier")
                    if st + 1 == 8:
                        for j in range(4): a(f"v_add_u32 v{81+j}, 49152, v{81+j}")
                sc.at(base + 0.0, pre)
                for k, f in enumerate(self.q16_reads(st + 1)): sc.at(base + 0.1 + 1.5 * k, f)
            if st == 8:
                sc.at(base + 22.0, lambda: (a("v_mov_b32 v73, 0"), a.vm("global_load_dword v72, v73, s[46:47] sc1", "nonce")))
            fl = self.q_fills(2 * st + 6) + self.q_fills(2 * st + 7) if st else self.q_fills(7)
            for k, (_, f) in enumerate(fl): sc.at(base + 1.0 + 22.0 * k / max(len(fl), 1), f)
        sc.emit()
        for _, f in self.q_fills(38): f()
        for j in range(8): a(f"v_add_u32 v{self.V_KA+j}, 49152, v{self.V_KA+j}")
    def qphase(self):
        a = self.a
        self.kplan = 0
        if self.opt.get("poison", "none") == "start":
            for _, f in self.poison_fills(76): f()
        if self.opt.get("kpos"):
            a(self.opt.get("ksel", "s_lshr_b32 s61, s34, 3\ns_add_u32 s61, s61, s3") + f"\ns_and_b32 s61, s61, {len(self.opt['kpos'])-1}")
            self.k_burst(-1)
        for m in range(6): self.ld_x(0, m)
        for _, f in self.q_fills(0): f()
        self.setup2()
        if self.opt.get("poison", "none") == "start2":
            for _, f in self.poison_fills(76): f()
        for tau in range(1, 7):
            for _, f in self.q_fills(tau): f()
        a.wait(vm=["x0", "wq0"])
        a("s_barrier")
        self.stamp()
        if self.q16: self.qloop16()
        else: self.qloop32()
        if self.opt.get("kpos"):
            self.k_burst(99)
        else:
            while self.kplan < 32:
                self.ld_kreg(self.kplan); self.kplan += 1
        a(f"s_sub_u32 s50, s28, {XB + 49152}")
        for j in range(8): a(f"v_add_u32 v{self.V_KA+j}, s50, v{self.V_KA+j}")
        a.wait(vm="nonce")
        a("v_readfirstlane_b32 s62, v72")
        if self.opt.get("kpos"): self.k_model()
        a("s_barrier")
        self.stamp()
        mains = []
        if self.q16:
            for nt in range(4):
                def cv(nt=nt):
                    for qt in range(6):
                        tb = self.QACC + (nt * 6 + qt) * 4
                        for k in range(2): a(f"v_pk_mul_f32 {vr(tb+2*k, 2)}, {vr(tb+2*k, 2)}, s[42:43]")
                    for qt in range(6):
                        tb = self.QACC + (nt * 6 + qt) * 4
                        for k in range(2): a(f"v_cvt_pk_bf16_f32 v{tb+k}, v{tb+2*k}, v{tb+2*k+1}")
                        f = nt * 3 + (qt >> 1)
                        a.ds(f"ds_write_b64 v{self.V_QW if f < 8 else 11}, {vr(tb, 2)} offset:{(f%8)*1024 + (qt&1)*256}", "qw")
                mains.append(cv)
        else:
            for t in range(2):
                for i in range(3):
                    def cv(t=t, i=i):
                        tb = self.QACC + (t * 3 + i) * 16
                        for k in range(8): a(f"v_pk_mul_f32 {vr(tb+2*k, 2)}, {vr(tb+2*k, 2)}, s[42:43]")
                        for k in range(8): a(f"v_cvt_pk_bf16_f32 v{tb+k}, v{tb+2*k}, v{tb+2*k+1}")
                        for u in range(2):
                            for pc in range(2):
                                f = (t*2+u)*3+i
                                a.ds(f"ds_write_b64 v{self.V_QW if f < 8 else 11}, {vr(tb + u*4 + pc*2, 2)} offset:{(f%8)*1024 + pc*512}", "qw")
                    mains.append(cv)
        interleave(mains, self.seg_fills("X1"), first=24)
        a.wait(lg="all")
        a("s_barrier")
        if self.opt.get("sparse1", 1):
            a(f"""v_and_b32 v20, 0x1b0, v{self.V_L16}
            v_mov_b32 v21, 0x3f803f80
            v_cmp_eq_u32 vcc, 0, v20""")
            for r in range(4): a(f"v_cndmask_b32 v{self.V_ONES+r}, 0, v21, vcc")
        else:
            for r in range(4): a(f"v_mov_b32 v{self.V_ONES+r}, 0x3f803f80")
        xh2 = self.opt.get('map', 'xh2') == 'xh2'
        a(f"""
        s_mov_b32 s4, s40
        s_mov_b32 s5, s41
        s_mov_b32 s6, 4194304
        s_lshr_b32 s50, s37, 1
        s_and_b32 s51, s3, 3
        s_lshl_b32 s50, s50, {3 if xh2 else 1}
        s_lshl_b32 s51, s51, {1 if xh2 else 3}
        s_add_u32 s50, s50, s51
        s_and_b32 s51, s37, 1
        s_add_u32 s50, s50, s51
        s_lshl_b32 s32, s50, 17
        s_lshl_b32 s50, s24, 15
        s_add_u32 s32, s32, s50
        s_lshr_b32 s50, s34, 3
        s_lshl_b32 s50, s50, 8
        s_add_u32 s32, s32, s50
        """)
        mains = []
        late = []
        for hd in range(2):
            for sp in range(8):
                for i in range(3):
                    f = (sp & 3) * 3 + i; ws = 2 * hd + (sp >> 2)
                    dst = ar(hd * 96 + (sp * 3 + i) * 4, 4)
                    if hd == 0: t = f"ds_read_b128 {dst}, v{self.V_L16 if f < 8 else 31} offset:{ws*32768 + (f%8)*1024}"
                    else: t = f"ds_read_b128 {dst}, v{self.V_PR} offset:{(ws&1)*12288 + f*1024}"
                    if hd == 1: late.append(t)
                    else: mains.append(lambda t=t: a.ds(t, "qx"))
        self.q2late = late
        self.nonce_check()
        if self.opt.get("local", 1):
            a(f"""s_getreg_b32 s50, hwreg(HW_REG_XCC_ID)
            s_lshl_b32 s50, s50, 1
            s_and_b32 s50, s50, 30
            s_xor_b32 s36, s62, s50
            v_mov_b32 v20, s31
            v_mov_b32 v21, s36""")
            a.vm("global_store_dword v20, v21, s[48:49] offset:-4096 sc1", "idst")
            self.p3_flagaddr()
        interleave(mains, self.seg_fills("X2"))
        a.wait(lg="all")
        a("s_barrier")
        self.stamp()
    def wopf_early(self):
        a = self.a
        xh2 = self.opt.get('map', 'xh2') == 'xh2'
        a(f"""
        s_lshr_b32 s50, s37, 1
        s_and_b32 s51, s3, 3
        s_lshl_b32 s50, s50, {3 if xh2 else 1}
        s_lshl_b32 s51, s51, {1 if xh2 else 3}
        s_add_u32 s50, s50, s51
        s_and_b32 s51, s37, 1
        s_add_u32 s50, s50, s51
        s_lshl_b32 s51, s50, 17
        s_lshl_b32 s50, s24, 15
        s_add_u32 s51, s51, s50
        s_lshr_b32 s50, s34, 3
        s_lshl_b32 s50, s50, 8
        s_add_u32 s51, s51, s50
        v_lshrrev_b32 v74, 8, v28
        v_and_b32 v75, 0x80, v28
        v_lshl_add_u32 v74, v74, 10, v75
        v_add_u32 v74, s51, v74""")
        a.vm("global_load_dword v0, v74, s[40:41]", "pfw")
    def wopf2_fills(self):
        a = self.a
        def f():
            a(f"""s_and_b32 s50, s37, 1
            s_lshl_b32 s51, s50, 17
            s_lshl_b32 s50, s50, 14
            s_sub_u32 s26, s32, s51
            s_add_u32 s26, s26, s50
            s_add_u32 s26, s26, 131072
            v_and_b32 v20, 0xf00, v28
            v_and_b32 v21, 0x80, v28
            v_lshl_add_u32 v20, v20, 2, v21""")
            a.vm(f"buffer_load_dword v0, v20, s[4:7], s26 offen", "pfw")
        return [(24, f)]
    def wopf_fills(self):
        a = self.a
        def f():
            a(f"""v_lshrrev_b32 v20, 8, v28
            v_and_b32 v21, 0x80, v28
            v_lshl_add_u32 v20, v20, 10, v21""")
            a.vm(f"buffer_load_dword v0, v20, s[4:7], s32 offen", "pfw")
        return [(24, f)]
    def poison_fills(self, R=232):
        a = self.a
        def f(k):
            if k == 0:
                for r in range(4): a(f"v_mov_b32 v{R+r}, -1")
            a(f"s_add_u32 s26, s33, {24576 + k*1024}")
            a.vm(f"buffer_store_dwordx4 {vr(R, 4)}, v{self.V_L16}, s[20:23], s26 offen sc1", "poison")
        return [(24, lambda k=k: f(k)) for k in range(6)]
    def q2_fills(self):
        a = self.a
        return [(8, lambda t=t: a.ds(t, "q2")) for t in self.q2late]

    def k_write(self, g, i):
        self.a.ds(f"ds_write_b128 v{self.V_LIN}, {self.kland(g, i)} offset:{self.slot(g)*8192 + i*1024}", "kw")
    def k_read(self, idx, j):
        self.a.ds(f"ds_read_b128 {vr(self.V_F + j*4, 4)}, v{self.V_KA+j} offset:{self.slot(idx)*8192}", f"kf{idx}_{j}")
    def exp_fills(self, g, halves=(0, 1)):
        a = self.a
        f = []
        for s in halves:
            for i in range(3):
                b = self.S(g, i)
                for r in range(8*s, 8*s+8): f.append((8, lambda r=r, b=b: a(f"v_exp_f32 v{b+r}, v{b+r}")))
                for k in range(4):
                    f.append((4, lambda b=b, k=k, s=s, i=i: a(f"v_cvt_pk_bf16_f32 v{self.P(g, i, s)+k}, v{b+8*s+2*k}, v{b+8*s+2*k+1}")))
        return f
    def qk_tile(self, item, g):
        a = self.a
        idx = item * 8 + g
        if g == 0:
            a.wait(vm=f"T{idx}")
            self.tstamp()
            if item == 0:
                for i in range(8): self.k_write(0, i)
            for j in range(4): self.k_read(idx, j)
        sc = Sched()
        order = [(j, i) for j in range(8) for i in range(3)]
        if self.opt.get("chain"): order = [(j, i) for hf in range(2) for i in range(3) for j in range(4*hf, 4*hf + 4)]
        for j, i in order:
            if 1:
                def m(j=j, i=i):
                    a.wait(lg=f"kf{idx}_{j}")
                    d = vr(self.S(g, i), 16)
                    a(f"{MF32} {d}, {vr(self.V_F + j*4, 4)}, {ar(item*96 + (j*3+i)*4, 4)}, {d if j else 0}")
                sc.main(m)
        for j in range(4, 8): sc.at(j - 4 + 0.0, lambda j=j: self.k_read(idx, j))
        def mid():
            if g < 3:
                a.wait(vm=f"T{idx+1}")
                self.tstamp()
            if item == 1 and g == self.opt.get("pub0at", 1): a.wait(vm="O0")
            if item == 1 and "O0" not in a.vmq and not self.fl0_done:
                self.fl0_done = True
                self.flag_store(0)
        staged = item == 0 and g + 1 < self.nreg
        sc.at(4.0 if staged else 12.0, mid)
        if g < 3:
            if staged:
                for i in range(8): sc.at(4.1 + i, lambda i=i: self.k_write(g + 1, i))
            for j in range(4): sc.at(13.0 + 3 * j, lambda j=j: self.k_read(idx + 1, j))
        ex = self.exp_fills(g - 1) if g > 0 else []
        other = []
        if item == 0 and g == 0: other = self.q2_fills()
        if g == 3: other = [(16, lambda i=i: self.p_write(0, i)) for i in range(3)]
        if item == 0 and g == 2 and self.opt.get("poison", "none") == "Q2": other = self.poison_fills()
        if item == 0 and g == 3 and self.opt.get("wopf", 1) == 1: other = other + self.wopf_fills()
        if item == 1 and g == 3: other = [(24, lambda: (self.p3_flagaddr(), self.flag_load(0)))] + other
        if item == 0 and g == 3 and self.opt.get("local", 1):
            other = other + [(24, lambda: a.vm(f"global_load_dword v{self.V_FR}, v{self.V_FL}, s[48:49] offset:-4096 sc1", "ids"))]
        seg = ("Q" if item == 0 else "q") + str(g)
        if self.opt.get("wopf") == seg: other = other + self.wopf_fills()
        if ex: sc.spread(ex, 3.0, 24)
        if other: sc.spread(other, 0.5, 24)
        for h, (lo, hi) in zip("ab", ((0.5, 12), (12.5, 24))):
            f = self.seg_fills(seg + h)
            if f: sc.spread(f, lo, hi)
        sc.emit()
        if item == 0 and g == 1: a("s_barrier")

    def p_write(self, hf, i):
        a = self.a
        g, s = hf >> 1, hf & 1
        if 1:
            a.ds(f"ds_write_b128 v{self.V_PW}, {vr(self.P(g, i, s), 4)} offset:{s*12288 + i*1024}", "pw")
    def pv_buf(self, n):
        return [("v", self.V_F), ("v", self.V_F + 16), ("a", self.A_F)][n % 3]
    def pv_read_ops(self, sl, s, wsrc, n):
        a = self.a
        f, b = self.pv_buf(n)
        ops = [(lambda u=u: a.ds(f"ds_read_b64_tr_b16 {vr(b + 2*u, 2, f)}, v{self.V_VA + (wsrc>>1)} offset:{(wsrc&1)*32768 + sl*8192 + (16*s + 8*u)*256}", f"pv{n}_0")) for u in range(2)]
        ops += [(lambda i=i: a.ds(f"ds_read_b128 {vr(b + 4 + 4*i, 4, f)}, v{self.V_PR} offset:{s*12288 + wsrc*3072 + i*1024}", f"pv{n}_{i}")) for i in range(3)]
        return ops
    def pv_reads(self, sl, s, wsrc, n):
        for f in self.pv_read_ops(sl, s, wsrc, n): f()
    ONES_AT = {0: (0, 1), 1: (2, 3), 2: (4,), 3: (5,), 4: (6,), 5: (7,)}
    RPOS = [0.1, 0.2, 0.3, 1.1, 2.1]
    def pv(self, item):
        a = self.a
        sc = Sched()
        gstart = {}; sub = {}
        for hf in range(8):
            sub[hf] = len(sc.mains)
            for wsrc in range(4):
                n = hf * 4 + wsrc
                if wsrc == (0 if hf == 0 else 1):
                    for k in self.ONES_AT.get(hf, ()):
                        for i in range(3):
                            def o(k=k, i=i):
                                d = vr(self.SB[0] + i * 16, 16)
                                a(f"{MF32} {d}, {vr(self.V_ONES, 4)}, {vr(self.P(k >> 1, i, k & 1), 4)}, {d if k else 0}")
                            sc.main(o)
                gstart[n] = len(sc.mains)
                for i in range(3):
                    def m(n=n, i=i):
                        a.wait(lg=[f"pv{n}_0", f"pv{n}_{i}"])
                        f, b = self.pv_buf(n)
                        d = ar(self.A_O + i * 16, 16)
                        a(f"{MF32} {d}, {vr(b, 4, f)}, {vr(b + 4 + 4*i, 4, f)}, {d if n else 0}")
                    sc.main(m)
        sub[8] = len(sc.mains)
        bar = {}
        for hf in range(8):
            g, s = hf >> 1, hf & 1
            idx = item * 8 + 4 + g
            def sync(hf=hf, s=s, idx=idx):
                if self.opt.get("halfv", 1): a.wait(vm=(f"T{idx}" if s == 0 else f"T{idx}b"), lg="all")
                else: a.wait(vm=([f"T{idx}", f"T{idx}b"] if s == 0 else None), lg="all")
                if s == 0: self.tstamp()
                a("s_barrier")
                if item == 1 and hf == self.opt.get("chk0at", 1): self.flag_check(0)
            bar[hf] = -1.0 if hf == 0 else gstart[4 * hf - 2] - 0.05
            sc.at(bar[hf], sync)
            for wsrc in range(4):
                n = hf * 4 + wsrc
                ops = self.pv_read_ops(self.slot(idx), s, wsrc, n)
                for k, f in enumerate(ops):
                    if n < 2: sc.at(-0.9 + 0.1 * n + 0.01 * k, f)
                    elif wsrc == 0: sc.at(gstart[n - 2] + [-0.04, -0.03, -0.02, 0.1, 1.1][k], f)
                    else: sc.at(gstart[n - 2] + self.RPOS[k], f)
        bar[8] = sub[8]
        if self.opt.get("earlysum", 1):
            sc.at(bar[7] + 3.3, lambda: self.sum_reads())
            sc.at(bar[7] + 9.3, lambda: self.sum_eval())
        for hf in range(8):
            lo, hi = max(bar[hf], 0) + 0.5, bar[hf + 1] - 0.1
            if hf + 1 < 8:
                for i in range(3): sc.at(lo + 1.0 + 2 * i, lambda hf=hf, i=i: self.p_write(hf + 1, i))
            ld = self.seg_fills(("P" if item == 0 else "p") + str(hf))
            ex = []
            if hf < 4:
                e = self.exp_fills(3, (hf >> 1,))
                ex = e[:len(e)//2] if hf % 2 == 0 else e[len(e)//2:]
            other = []
            if hf == 6:
                sc.at(hi - 4, lambda: [a.ds(f"ds_write_b32 v{self.V_STW}, v{self.SB[0] + i*16} offset:{1536 + i*512}", "st") for i in range(3)])
            if item == 1:
                if self.opt.get("wopf") == f"p{hf}": ld = ld + self.wopf_fills()
                c0 = self.opt.get("chk0at", 1)
                if hf >= c0:
                    self.fl0_checked = True
                    nseg = self.opt.get("ospan", 4)
                    upto = min(18, (18 * (hf - c0 + 1) + nseg - 1) // nseg)
                    other += [(24, lambda n=n: self.ld_o(1 + n // 6, n % 6)) for n in range(self.o_issued, upto)]
                    self.o_issued = upto
                if self.opt.get("wopf2") == f"p{hf}": other += self.wopf2_fills()
            for f in (ld, ex, other):
                if f: sc.spread(f, lo, hi)
        sc.emit()

    def sum_reads(self):
        T = self.SB[1]
        for i in range(3): self.a.ds(f"ds_read_b128 {vr(T + i*4, 4)}, v{self.V_STR} offset:{1536 + i*512}", f"sm{i}")
    def sum_eval(self):
        a = self.a
        T = self.SB[1]
        a(f"s_mov_b32 s50, {f2u(2.0 ** self.opt.get('lo', -30)):#x}\ns_mov_b32 s51, {f2u(2.0 ** 30):#x}")
        for i in range(3):
            a.wait(lg=f"sm{i}")
            b = T + i * 4
            a(f"v_add_f32 v{b}, v{b}, v{b+1}\nv_add_f32 v{b+2}, v{b+2}, v{b+3}\nv_add_f32 v{b}, v{b}, v{b+2}")
        a(f"""
        v_min3_f32 v{T+1}, v{T}, v{T+4}, v{T+8}
        v_max3_f32 v{T+2}, v{T}, v{T+4}, v{T+8}
        v_cmp_u_f32 vcc, v{T}, v{T+4}
        v_cmp_u_f32 s[0:1], v{T+8}, v{T+8}
        s_or_b64 s[0:1], vcc, s[0:1]
        v_cmp_nle_f32 vcc, s50, v{T+1}
        s_or_b64 s[0:1], vcc, s[0:1]
        v_cmp_nge_f32 vcc, s51, v{T+2}
        s_or_b64 s[0:1], vcc, s[0:1]
        """)
        for i in range(3): a(f"v_rcp_f32 v{T+12+2*i}, v{T+i*4}\nv_rcp_f32 v{T+13+2*i}, v{T+i*4}")
    def epilogue(self, item):
        a = self.a
        T = self.SB[1]
        if not self.opt.get("earlysum", 1):
            a.label(f"L_epi{item}")
            self.sum_reads(); self.sum_eval()
        a(f"""
        s_mov_b64 vcc, s[0:1]
        s_and_b64 vcc, vcc, s[{self.s_chk}:{self.s_chk+1}]
        s_cbranch_vccnz L_slow{item}
        """)
        if self.opt.get("earlysum", 1): a.label(f"L_epi{item}")
        a(f"s_mov_b64 s[{self.s_chk}:{self.s_chk+1}], -1")
        if item == 0 and self.opt.get("local", 1):
            a.wait(vm="ids")
            a(f"""v_cmp_ne_u32 vcc, s36, v{self.V_FR}
            s_cmp_eq_u64 vcc, 0
            s_cselect_b32 s61, {self.opt.get('force', 1)}, 0""")
        ef = self.seg_fills("E" if item == 0 else "e")
        if item == 1 and self.o_issued < 18:
            if not self.fl0_checked: self.flag_check(0)
            ol = [(24, lambda n=n: self.ld_o(1 + n // 6, n % 6)) for n in range(self.o_issued, 18)]
            k = self.opt.get("efirst", 0)
            ef = ef[:k] + merge(ol, ef[k:])
        for i in range(3):
            tb = self.V_P + i * 24
            if item == 0 or not self.opt.get("elast", 1):
                for _, f in ef[len(ef)*i//3:len(ef)*(i+1)//3]: f()
            else:
                n1 = self.opt.get("efirst", 0)
                for _, f in ef[n1*i//3:n1*(i+1)//3]: f()
            for r in range(16): a(f"v_accvgpr_read_b32 v{tb+r}, a{self.A_O + i*16 + r}")
            for r in range(8): a(f"v_pk_mul_f32 {vr(tb+2*r, 2)}, {vr(tb+2*r, 2)}, {vr(T+12+2*i, 2)}")
            if item == 0:
                for k in range(8): a(f"v_cvt_pk_bf16_f32 v{tb+16+k}, v{tb+2*k}, v{tb+2*k+1}")
                for k in range(8): a(f"v_accvgpr_write_b32 a{((k>>2)*3 + i)*4 + (k&3)}, v{tb+16+k}")
            else:
                for k in range(8): a(f"v_cvt_pk_bf16_f32 v{tb+16+k}, v{tb+2*k}, v{tb+2*k+1}")
                if i == 0: self.o_write(0)
        regs = [self.V_P + (f % 3) * 24 + 16 + (f // 3) * 4 for f in range(6)]
        a(f"s_add_u32 s26, s33, 0" if item == 0 else f"s_lshl_b32 s26, s24, 11\ns_add_u32 s26, s26, s33\ns_add_u32 s26, s26, 24576")
        a("s_add_u32 s50, s26, 4096")
        def stores(pol):
            for f, r in enumerate(regs):
                a(f"buffer_store_dwordx4 {vr(r, 4)}, v{self.V_L16}, s[20:23], {'s26' if f < 4 else 's50'} offen offset:{(f%4)*1024}{pol}")
        if self.opt.get("local", 1):
            far = a.newlabel("L_far"); done = a.newlabel("L_std")
            a(f"s_cmp_eq_u32 s61, 0\ns_cbranch_scc1 {far}")
            stores(self.opt.get("lspol", ""))
            a(f"s_branch {done}")
            a.label(far)
            stores(" sc1")
            a.label(done)
        else:
            stores(" sc1")
        a.vmq += [f"O{item}"] * len(regs)
        if item == 1:
            if self.opt.get("elast", 1): self.e_rest = ef[self.opt.get("efirst", 0):]
    s_chk = 38

    def item(self, item):
        for g in range(4): self.qk_tile(item, g)
        if item == 1:
            if not self.fl0_done:
                self.a.wait(vm="O0"); self.flag_store(0); self.fl0_done = True
            self.p3_setup()
        self.stamp()
        self.pv(item)
        if item == 1: self.in3 = True
        self.stamp()
        self.a("s_barrier")
        self.epilogue(item)
        self.stamp()

    def slow(self, item):
        a = self.a
        a.vmq = []; a.lgq = []
        S = lambda g, i: 64 + (g * 3 + i) * 16
        F = self.V_F; M = [29, 30, 31]; MC = [20, 21, 1]; L = [60, 61, 62]
        a.label(f"L_slow{item}")
        a("s_waitcnt vmcnt(0) lgkmcnt(0)\ns_barrier")
        a(f"s_mov_b64 s[{self.s_chk}:{self.s_chk+1}], 0")
        if item == 1:
            self.lane_parts(33); self.ksrc_addrs(33); self.ka_addrs(33, "s28")
        for g in range(4):
            for i in range(8): self.ld_piece(item * 8 + g, i, slot=g)
        a.wait(vm="all")
        for g in range(4):
            for j in range(8): a.ds(f"ds_read_b128 {vr(F + j*4, 4)}, v{self.V_KA+j} offset:{g*8192}", "kf")
            a.wait(lg="all")
            for j in range(8):
                for i in range(3):
                    d = vr(S(g, i), 16)
                    a(f"{MF32} {d}, {vr(F + j*4, 4)}, {ar(item*96 + (j*3+i)*4, 4)}, {d if j else 0}")
        for g in range(4):
            for i in range(8): self.ld_piece(item * 8 + 4 + g, i, slot=g)
        for i in range(3):
            a(f"v_mov_b32 v{M[i]}, v{S(0, i)}")
            for g in range(4):
                for k in range(8): a(f"v_max3_f32 v{M[i]}, v{M[i]}, v{S(g, i)+2*k}, v{S(g, i)+2*k+1}")
        for i in range(3): a(f"v_mov_b32 v{F+i}, v{M[i]}")
        for i in range(3): a(f"v_permlane32_swap_b32 v{M[i]}, v{F+i}")
        for i in range(3): a(f"v_max_f32 v{M[i]}, v{M[i]}, v{F+i}")
        for i in range(3): a.ds(f"ds_write_b32 v{self.V_STW}, v{M[i]} offset:{i*512}", "st")
        a.wait(lg="all")
        a("s_barrier")
        for i in range(3): a.ds(f"ds_read_b128 {vr(F + 4 + i*4, 4)}, v{self.V_STR} offset:{i*512}", "sm")
        a.wait(lg="all")
        for i in range(3):
            b = F + 4 + i * 4
            a(f"v_max3_f32 v{b}, v{b}, v{b+1}, v{b+2}\nv_max_f32 v{MC[i]}, v{b}, v{b+3}\nv_mov_b32 v{L[i]}, 0")
        for g in range(4):
            for i in range(3):
                s = S(g, i)
                for r in range(16): a(f"v_sub_f32 v{s+r}, v{s+r}, v{MC[i]}")
                for r in range(16): a(f"v_exp_f32 v{s+r}, v{s+r}")
                for k in range(8):
                    a(f"v_add_f32 v{L[i]}, v{L[i]}, v{s+2*k}\nv_add_f32 v{L[i]}, v{L[i]}, v{s+2*k+1}")
                    a(f"v_cvt_pk_bf16_f32 v{s+k}, v{s+2*k}, v{s+2*k+1}")
        for i in range(3): a(f"v_mov_b32 v{F+i}, v{L[i]}")
        for i in range(3): a(f"v_permlane32_swap_b32 v{L[i]}, v{F+i}")
        for i in range(3): a(f"v_add_f32 v{L[i]}, v{L[i]}, v{F+i}")
        for i in range(3): a.ds(f"ds_write_b32 v{self.V_STW}, v{L[i]} offset:{1536 + i*512}", "st")
        a.wait(vm="all")
        for g in range(4):
            for s in range(2):
                for i in range(3):
                    a.ds(f"ds_write_b128 v{self.V_PW}, {vr(S(g, i) + 4*s, 4)} offset:{s*12288 + i*1024}", "pw")
            a.wait(lg="all")
            a("s_barrier")
            for s in range(2):
                for wsrc in range(4):
                    self.pv_reads(g, s, wsrc, 0)
                    a.wait(lg="all")
                    for i in range(3):
                        d = ar(self.A_O + i * 16, 16)
                        a(f"{MF32} {d}, {vr(F, 4)}, {vr(F + 4 + 4*i, 4)}, {d if (g or s or wsrc) else 0}")
            a("s_barrier")
        if item == 1: self.p3_addrs(48); self.p3_flagaddr(); a.cache = {}
        for idx in range(item * 8 + 8, item * 8 + 11):
            for _, f in self.tile_fills(idx): f()
        if self.opt.get("earlysum", 1):
            self.sum_reads(); self.sum_eval()
        if item == 0: a(f"v_not_b32 v{self.V_FR}, s36")
        a("s_waitcnt vmcnt(0)")
        a.nop(16)
        a(f"s_branch L_epi{item}")

    def p3_flagaddr(self):
        self.a(f"""
        s_and_b32 s30, s31, {(1 << 32) - 16:#x}
        v_and_b32 v{self.V_FL}, 0x30, v{self.V_L16}
        v_lshrrev_b32 v{self.V_FL}, 2, v{self.V_FL}
        v_add_u32 v{self.V_FL}, s30, v{self.V_FL}
        """)
    def p3_setup(self):
        a = self.a
        xh2 = self.opt.get('map', 'xh2') == 'xh2'
        a(f"""
        s_lshr_b32 s50, s34, 3
        s_and_b32 s51, s3, 3
        s_lshl_b32 s60, s35, 3
        s_add_u32 s60, s60, s37
        """)
        a(f"""
        s_lshl_b32 s42, s60, 2
        s_add_u32 s42, s42, s50
        s_mul_i32 s42, s42, {16*8192}
        s_lshl_b32 s63, s24, 11
        s_add_u32 s42, s42, s63
        """)
        a(f"""
        s_mul_i32 s43, s37, 43
        s_lshr_b32 s43, s43, 7
        s_mul_i32 s43, s43, 3
        s_sub_u32 s43, s37, s43
        """)
        for j in range(4):
            if j == 0: a("s_mov_b32 s26, s50")
            else:
                if self.opt.get("rot3", 1):
                    a(f"""s_add_u32 s26, s43, {j-1}
                    s_cmp_ge_u32 s26, 3
                    s_cselect_b32 s63, 3, 0
                    s_sub_u32 s26, s26, s63
                    s_add_u32 s26, s26, 1""")
                else: a(f"s_mov_b32 s26, {j}")
                a("s_add_u32 s26, s26, s50\ns_and_b32 s26, s26, 3")
            if xh2: a("s_lshl_b32 s26, s26, 3\ns_lshl_b32 s63, s51, 1\ns_add_u32 s26, s26, s63")
            else: a("s_lshl_b32 s26, s26, 1\ns_lshl_b32 s63, s51, 3\ns_add_u32 s26, s26, s63")
            a(f"""s_lshl_b32 s{56+j}, s26, 17
            s_lshl_b32 s63, s24, 15
            s_add_u32 s{56+j}, s{56+j}, s63
            s_lshl_b32 s63, s50, 8
            s_add_u32 s{56+j}, s{56+j}, s63
            s_lshl_b32 s63, s60, 5
            s_add_u32 s26, s26, s63
            s_mul_i32 s{52+j}, s26, 28672
            s_mul_i32 s63, s24, 6144
            s_add_u32 s{52+j}, s{52+j}, s63""")
        a(f"""
        s_mul_i32 s27, s37, 96
        s_lshl_b32 s63, s51, 3
        s_add_u32 s27, s27, s63
        s_lshl_b32 s27, s27, 11
        s_lshl_b32 s63, s35, 10
        s_add_u32 s27, s27, s63
        s_lshl_b32 s63, s50, 8
        s_add_u32 s27, s27, s63
        s_and_b32 s63, s24, 1
        s_lshl_b32 s63, s63, 7
        s_add_u32 s27, s27, s63
        s_lshr_b32 s63, s24, 1
        s_lshl_b32 s63, s63, 6
        s_add_u32 s27, s27, s63
        s_mov_b32 s8, s44
        s_mov_b32 s9, s45
        s_mov_b32 s10, 1572864
        s_mov_b32 s36, s51
        """)
        self.p3_addrs(48)
    def p3_addrs(self, t):
        a = self.a
        self.lane_parts(t)
        a(f"""
        v_lshlrev_b32 v{t+5}, 2, v{t+1}
        v_xor_b32 v{t+5}, v{t+2}, v{t+5}
        v_lshlrev_b32 v{t+5}, 4, v{t+5}
        v_lshl_add_u32 v{self.V_WO}, v{t+1}, 10, v{t+5}
        v_add_u32 v{self.V_WO+1}, 3072, v{self.V_WO}
        v_add_u32 v{self.V_WO+2}, 6144, v{self.V_WO}
        v_add_u32 v{self.V_WO+3}, 9216, v{self.V_WO}
        v_lshlrev_b32 v{t+5}, 1, v{t+4}
        v_lshl_add_u32 v{self.V_OUT}, v{t+3}, 13, v{t+5}
        v_add_u32 v{self.V_LIN}, s28, v{self.V_L16}
        v_add_u32 v31, 0x10000, v{self.V_L16}
        s_lshl_b32 s26, s24, 11
        v_add_u32 v19, s26, v{self.V_L16}
        s_xor_b32 s50, s24, 1
        s_mul_i32 s26, s50, 3072
        v_add_u32 v{self.V_PO}, s26, v{self.V_PR}
        s_lshl_b32 s26, s50, 15
        v_add_u32 v{self.V_PO+1}, s26, v{self.V_L16}
        s_xor_b32 s26, s28, 0x10000
        v_add_u32 v31, s26, v{self.V_L16}
        """)
        for src in range(2):
            for ntl in range(2):
                a(f"""s_and_b32 s26, s24, 1
                s_lshl_b32 s26, s26, 1
                s_lshr_b32 s50, s24, 1
                s_xor_b32 s50, s50, {ntl}
                s_add_u32 s26, s26, s50
                s_xor_b32 s26, s26, s24
                s_lshl_b32 s26, s26, 6
                v_xor_b32 v{t+5}, s26, v{self.V_VA}
                s_xor_b32 s26, s28, {src << 15}
                v_add_u32 v{self.V_TR + src*2 + ntl}, s26, v{t+5}""")
    def nonce_check(self):
        a = self.a
        lab = a.newlabel("L_np"); ok = a.newlabel("L_nok")
        a(f"""
        s_mov_b32 s63, 0
        s_cmp_lg_u32 s62, 0
        s_cbranch_scc1 {ok}
        """)
        a.label(lab)
        a(f"""
        v_mov_b32 v20, 0
        global_load_dword v21, v20, s[46:47] sc1
        s_waitcnt vmcnt(0)
        v_readfirstlane_b32 s62, v21
        s_add_u32 s63, s63, 1
        s_cmp_ge_u32 s63, {SPIN_MAX}
        s_cbranch_scc1 {ok}
        s_cmp_eq_u32 s62, 0
        s_cbranch_scc1 {lab}
        """)
        a.label(ok)
        a(f"""
        s_lshl_b32 s31, s35, 3
        s_add_u32 s31, s31, s37
        s_lshl_b32 s31, s31, 2
        s_and_b32 s60, s3, 3
        s_add_u32 s31, s31, s60
        s_lshl_b32 s31, s31, 2
        s_add_u32 s31, s31, s24
        s_lshl_b32 s31, s31, 2
        s_lshr_b32 s60, s34, 3
        s_add_u32 s31, s31, s60
        s_lshl_b32 s31, s31, 2
        s_add_u32 s31, s31, {FLAG_OFF}
        """)
    def flag_store(self, rnd):
        a = self.a
        assert f"O{rnd}" not in a.vmq
        a(f"v_mov_b32 v20, s31\nv_mov_b32 v21, s62")
        a.vm(f"global_store_dword v20, v21, s[48:49] offset:{-4096*rnd} sc1", f"fs{rnd}")
    def fl_ins(self, rnd):
        return f"global_load_dword v{self.V_FR}, v{self.V_FL}, s[48:49] offset:{-4096*rnd} sc1"
    def flag_load(self, rnd):
        self.a.vm(self.fl_ins(rnd), f"fl{rnd}")
    def flag_check(self, rnd):
        a = self.a
        a.wait(vm=f"fl{rnd}")
        lab = a.newlabel("L_poll"); ok = a.newlabel("L_pok")
        a(f"""
        v_cmp_ne_u32 vcc, s62, v{self.V_FR}
        s_mov_b32 s63, 0
        s_cbranch_vccz {ok}
        """)
        a.label(lab)
        a(f"""
        {self.fl_ins(rnd)}
        s_add_u32 s63, s63, 1
        s_waitcnt vmcnt(0)
        v_cmp_ne_u32 vcc, s62, v{self.V_FR}
        s_cmp_ge_u32 s63, {SPIN_MAX}
        s_cbranch_scc1 {ok}
        s_cbranch_vccnz {lab}
        """)
        a.label(ok)
    def p3_buf(self, n):
        return ("a", 96 + (n % (self.opt.get("p3d", 2) + 1)) * 16)
    def wo_slot(self, h): return self.slot(12 + h % 3)
    def ld_wo(self, h, i):
        a = self.a
        a.sset("m0", "s28", self.wo_slot(h)*8192 + (i>>2)*4096); a.sset("s43", f"s{56 + (h&3)}", (h>>2)*131072 + (i>>2)*16384)
        a.vm(f"buffer_load_dwordx4 v{self.V_WO+(i&3)}, s[4:7], s43 offen offset:{(i&3)*1024}{self.opt.get('wopol','')} lds", f"w{h}")
    def o_reg(self, h, f):
        if h == 4: return vr(self.V_P + (f % 3) * 24 + 16 + (f // 3) * 4, 4)
        if h < 4: return ar(h * 24 + f * 4, 4)
        return vr(self.o2base((h - 5) * 8 + f), 4)
    def o2base(self, q):
        return ([32 + 4*k for k in range(8)] + [112 + 4*k for k in range(16)])[q]
    def ld_o(self, h, f):
        a = self.a
        if h < 5:
            a.sset("s30", f"s{52 + (h&3)}", (f//4)*4096)
            a.vm(f"buffer_load_dwordx4 {self.o_reg(h, f)}, v{self.V_L16}, s[20:23], s30 offen offset:{(f%4)*1024}{self.opt.get('olpol', ' sc1')}", f"o{h}")
        else:
            a.sset("s30", f"s{52 + (h&3)}", 24576 + (f//4)*4096)
            a.vm(f"buffer_load_dwordx4 {vr(self.o2base((h-5)*8 + f), 4)}, v19, s[20:23], s30 offen offset:{(f%4)*1024}{self.opt.get('olpol', ' sc1')}", f"o{h}")
    def o_check(self, h):
        a = self.a
        a.wait(vm=f"o{h}")
        if self.in3 and "O1" not in a.vmq and not self.fl1_done and h >= 1:
            self.fl1_done = True
            self.flag_store(1)
    def o_write1(self, h, f):
        a = self.a
        if h % 2 == 0: a.ds(f"ds_write_b128 v{self.V_PW}, {self.o_reg(h, f)} offset:{(f//3)*12288 + (f%3)*1024}", "ow")
        else: a.ds(f"ds_write_b128 v{self.V_LIN}, {self.o_reg(h, f)} offset:{self.slot(15)*8192 + f*1024}", "ow")
    def o_write(self, h):
        self.o_check(h)
        for f in range(6): self.o_write1(h, f)
    ACC3 = [[64, 80, 96], [184, 208, 240]]
    def phase3(self):
        a = self.a
        ACC = 64
        D = self.opt.get("p3d", 3)
        o2at = self.opt.get("o2at", 3)
        sc = Sched()
        def groups(h):
            g = [(src, s, ntl) for src in range(2) for s in range(2) for ntl in range(2)]
            return g if h < 7 else sorted(g, key=lambda x: -x[2])
        first = {0: True, 1: True}
        for h in range(8):
            for g, (src, s, ntl) in enumerate(groups(h)):
                n = h * 8 + g
                for i in range(3):
                    def m(n=n, i=i, h=h, src=src, s=s, ntl=ntl, z=first[ntl]):
                        a.wait(lg=[f"r{n}"] + ([f"po{h}_{s*3+i}"] if src else []))
                        d = vr(self.ACC3[ntl][i], 16)
                        A = ar(96 + (h & 1) * 24 + (s * 3 + i) * 4, 4) if src else self.o_reg(h, s * 3 + i)
                        a(f"{MF32} {d}, {A}, {ar(144 + (n % (D + 1)) * 4, 4)}, {0 if z else d}")
                    sc.main(m)
                first[ntl] = False
        for h in range(8):
            def sync(h=h):
                a.wait(vm=f"w{h}", lg="all")
                a("s_barrier")
                if h in self.opt.get("p3st", (5,)): self.stamp()
            bar = -1.0 if h == 0 else (8 * h - D) * 3 - 0.05
            sc.at(bar, sync)
            for g, (src, s, ntl) in enumerate(groups(h)):
                n = h * 8 + g
                for u in range(2):
                    f = lambda n=n, h=h, src=src, s=s, ntl=ntl, u=u: a.ds(
                        f"ds_read_b64_tr_b16 {ar(144 + (n % (D + 1)) * 4 + 2*u, 2)}, v{self.V_TR + src*2 + ntl} offset:{self.wo_slot(h)*8192 + (16*s + 8*u)*256}", f"r{n}")
                    if n < D: sc.at(-0.9 + 0.1 * n + 0.01 * u, f)
                    elif g == 0: sc.at((n - D) * 3 + [-0.04, 0.1][u], f)
                    else: sc.at((n - D) * 3 + [0.1, 1.1][u], f)
            lo = max(bar, 0) + 0.5; hi = (8 * (h + 1) - D) * 3 - 0.1
            for f in range(6):
                off = (f // 3) * 12288 + (f % 3) * 1024 if h % 2 == 0 else self.slot(15) * 8192 + f * 1024
                sc.at(lo + 1.7 + (1.0 if h < 7 else 0.5) * f, lambda f=f, h=h, off=off: a.ds(
                    f"ds_read_b128 {ar(96 + (h & 1) * 24 + f * 4, 4)}, v{self.V_PO + (h & 1)} offset:{off}", f"po{h}_{f}"))
            if h + 1 < 8:
                ow = lo + (self.opt.get("owat", 8) if h < 4 else self.opt.get("owat2", 8))
                ow = min(ow, hi - 5)
                sp = min(2.0, (hi - 1.0 - ow) / 6)
                sc.at(ow, lambda h=h: self.o_check(h + 1))
                for f in range(6): sc.at(ow + 0.1 + sp * f, lambda h=h, f=f: self.o_write1(h + 1, f))
            fills = []
            if h == 0: fills += self.e_rest
            if h >= 1 and h + 2 < 8: fills += [(1, lambda i=i, h=h: self.ld_wo(h + 2, i)) for i in range(8)]
            o2 = []
            for hh, st in zip((5, 6, 7), self.opt.get("o2steps", (o2at, o2at + 1, o2at + 2))):
                if st == h: o2 += [(1, lambda f=f, hh=hh: self.ld_o(hh, f)) for f in range(6)]
            if h == self.opt.get("fl1at", 2): sc.at(lo + self.opt.get("fl1pos", 12), lambda: self.flag_load(1))
            if h == o2at:
                cp = lo + self.opt.get("chk1pos", 10)
                sc.at(cp, lambda: self.flag_check(1))
                if fills: sc.spread(fills, lo, cp - 0.1)
                sc.spread(o2, cp + 0.1, hi)
                continue
            fills = fills + o2 if self.opt.get("wofirst", 1) else o2 + fills
            if fills: sc.spread(fills, lo, hi)
        red = lambda k: (self.wo_slot(5) * 8192 + k * 1024) if k < 8 else (self.wo_slot(6) * 8192 + (k - 8) * 1024)
        for k in range(12):
            sc.at(56 * 3 + 12 + 3.2 + 0.7 * k, lambda k=k: a.ds(f"ds_write_b128 v{self.V_LIN}, {vr(self.ACC3[1][k >> 2] + (k & 3) * 4, 4)} offset:{red(k)}", "rw"))
        def prep():
            a(f"""
            s_mov_b32 s16, s48
            s_mov_b32 s17, s49
            s_add_u32 s16, s16, {PART_OFF}
            s_addc_u32 s17, s17, 0
            s_mov_b32 s18, {PART_BYTES}
            s_lshl_b32 s50, s36, 13
            s_add_u32 s50, s50, s42
            s_lshl_b32 s51, s36, 15
            s_add_u32 s51, s51, s42
            """)
            for j in range(1, 4):
                a(f"s_add_u32 s{56+j}, s36, {j}\ns_and_b32 s{56+j}, s{56+j}, 3\ns_lshl_b32 s{56+j}, s{56+j}, 13\ns_add_u32 s{56+j}, s{56+j}, s51")
        sc.at(64 * 3 - 12, prep)
        for d in range(4):
            for q in range(2): sc.at(64 * 3 - 10 + d * 2 + q, lambda d=d, q=q: a(f"v_mov_b32 v{32 + d*8 + q*4 + 3}, s62"))
        sc.emit()
        assert self.fl1_done
        a.wait(lg="all")
        a("s_barrier")
        for k in range(12): a.ds(f"ds_read_b128 {vr(112 + k*4, 4)}, v31 offset:{red(k)}", f"rr{k>>2}")
        for i in range(3):
            a.wait(lg=f"rr{i}")
            for k in range(8): a(f"v_pk_add_f32 {vr(ACC + i*16 + 2*k, 2)}, {vr(ACC + i*16 + 2*k, 2)}, {vr(112 + i*16 + 2*k, 2)}")
        self.stamp()
        T = 160; R = 112
        GD = lambda d: 32 + d * 8
        for d in range(4):
            pass
        done = a.newlabel("L_own")
        for d in range(4):
            own = a.newlabel("L_d"); nxt = a.newlabel("L_n")
            a(f"s_cmp_eq_u32 s36, {d}\ns_cbranch_scc1 {own}")
            for k in range(6):
                src = ACC + (k >> 1) * 16 + d * 4 + (k & 1) * 2
                a(f"v_cvt_pk_bf16_f32 v{GD(d) + (k//3)*4 + k%3}, v{src}, v{src+1}")
            a(f"s_add_u32 s26, s50, {d*32768}")
            for q in range(2):
                a(f"buffer_store_dwordx4 {vr(GD(d) + q*4, 4)}, v{self.V_L16}, s[16:19], s26 offen offset:{q*1024} sc1")
            a(f"s_branch {nxt}")
            a.label(own)
            for e in range(12): a(f"v_mov_b32 v{T+e}, v{ACC + (e>>2)*16 + d*4 + (e&3)}")
            a.label(nxt)
        self.stamp()
        def poll(Rb):
            for j in range(1, 4):
                for q in range(2):
                    a(f"buffer_load_dwordx4 {vr(Rb + (j-1)*8 + q*4, 4)}, v{self.V_L16}, s[16:19], s{56+j} offen offset:{q*1024} sc1")
        def check(Rb):
            for g in range(6): a(f"v_xor_b32 v{140+g}, s62, v{Rb + g*4 + 3}")
            a(f"""
            v_or3_b32 v20, v140, v141, v142
            v_or3_b32 v21, v143, v144, v145
            v_or_b32 v20, v20, v21
            v_cmp_ne_u32 vcc, 0, v20
            """)
        lab = a.newlabel("L_pp"); ok = a.newlabel("L_pok"); okb = a.newlabel("L_pokb")
        R2 = 228
        if self.opt.get("poll2", 0):
            a("s_mov_b32 s63, 0")
            poll(R)
            a.label(lab)
            a(f"s_sleep {self.opt.get('psleep', 2)}")
            poll(R2)
            a("s_add_u32 s63, s63, 1\ns_waitcnt vmcnt(6)")
            check(R)
            a(f"s_cbranch_vccz {ok}\ns_sleep {self.opt.get('psleep', 2)}")
            poll(R)
            a("s_waitcnt vmcnt(6)")
            check(R2)
            a(f"s_cbranch_vccz {okb}\ns_cmp_lt_u32 s63, {SPIN_MAX}\ns_cbranch_scc1 {lab}")
            a.label(okb)
            a("s_waitcnt vmcnt(0)")
            a.label(ok)
        else:
            a("s_mov_b32 s63, 0")
            a.label(lab)
            if self.opt.get("psleep", 0): a(f"s_sleep {self.opt['psleep']}")
            poll(R)
            a("s_add_u32 s63, s63, 1\ns_waitcnt vmcnt(0)")
            check(R)
            a(f"s_cmp_ge_u32 s63, {SPIN_MAX}\ns_cbranch_scc1 {ok}\ns_cbranch_vccnz {lab}")
            a.label(ok)
        a.vmq = []
        self.stamp()
        for j in range(3):
            for k in range(6):
                src = R + j * 8 + (k // 3) * 4 + k % 3
                t = T + 12 + 2 * (k & 1)
                a(f"""v_lshlrev_b32 v{t}, 16, v{src}
                v_and_b32 v{t+1}, 0xffff0000, v{src}
                v_pk_add_f32 {vr(T+2*k, 2)}, {vr(T+2*k, 2)}, {vr(t, 2)}""")
        for k in range(6): a(f"v_cvt_pk_bf16_f32 v{T+48+k}, v{T+2*k}, v{T+2*k+1}")
        for i in range(3):
            for k in range(2):
                a(f"s_add_u32 s26, s27, {(i*32 + 2*k)*2048}")
                a.vm(f"buffer_store_short v{T+48+i*2+k}, v{self.V_OUT}, s[8:11], s26 offen", "st")
                a.vm(f"buffer_store_short_d16_hi v{T+48+i*2+k}, v{self.V_OUT}, s[8:11], s26 offen offset:2048", "st")

    def finish(self):
        a = self.a
        if self.stamps:
            a("s_waitcnt vmcnt(0)")
            self.final = True
            self.stamp()
            a(f"""
            s_lshl_b32 s50, s2, 2
            s_add_u32 s50, s50, s24
            s_lshl_b32 s50, s50, 7
            s_add_u32 s50, s50, {STAMP_OFF}
            v_mov_b32 v32, s50
            s_getreg_b32 s51, hwreg(HW_REG_XCC_ID)
            v_mov_b32 v33, s51
            global_store_dword v32, v33, s[48:49] offset:124
            """)
            a("s_sub_u32 s98, s100, s98\nv_mov_b32 v33, s98\nglobal_store_dword v32, v33, s[48:49] offset:120")
            for k in range(self.nst):
                a(f"v_mov_b32 v33, s{64+2*k}\nglobal_store_dword v32, v33, s[48:49] offset:{4*k}")
        a.label("L_end")
        a("s_endpgm")

    def build(self):
        c = self.a.c
        c("---- setup: ids, descriptors, per-lane addresses")
        self.setup()
        c("---- Q projection of both heads (x, wq by LDS-DMA; K of item 0 lands in registers), Q exchange through LDS")
        self.qphase()
        self.a(f"s_mov_b64 s[{self.s_chk}:{self.s_chk+1}], -1")
        c("---- item 0: S^T = K Q^T, P = 2^S, O^T = V^T P^T, row sums by MFMA, range check, publish O")
        self.item(0)
        c("---- item 1")
        self.item(1)
        c("---- output projection over the 8 heads of this workgroup's group, exchange of partial sums, store")
        self.phase3()
        self.finish()
        c("---- fallback: item 0 again with the row's true maximum subtracted")
        self.slow(0)
        c("---- fallback: item 1 again with the row's true maximum subtracted")
        self.slow(1)
        return self.a.text()

def gen(fname, stamps=False, kvpol=" nt", opt=None):
    opt = opt or {}
    k = KF(stamps, kvpol, opt)
    b1 = k.build()
    abl = opt.get("abl", "")
    if abl:
        out = []; main = True; started = False
        for l in b1.split("\n"):
            t = l.strip()
            if t.startswith("v_pk_mul_f32") or ("q" in abl and t.startswith("s_barrier")): started = True
            if t.startswith("s_getreg_b32"): started = False
            if "M" in abl and t.startswith("v_mfma"): continue
            if "M" in abl and t.startswith("s_cbranch_vccnz L_slow"): continue
            if started:
                if "m" in abl and (t.startswith("buffer_") or t.startswith("global_")): continue
                if "m" in abl and t.startswith("s_cmp_ge_u32 s63"): l = "    s_cmp_ge_u32 s63, 0"
                if "m" in abl and t.startswith("s_cbranch_vccnz L_slow"): continue
                if "e" in abl and t.startswith("v_exp_f32"): continue
                if "c" in abl and t.startswith("v_cvt_pk"): continue
                if "w" in abl and t.startswith("ds_write"): continue
                if "r" in abl and t.startswith("ds_read"): continue
                if "b" in abl and t.startswith("s_barrier"): continue
                if "s" in abl and (t.startswith("s_add_u32 m0") or t.startswith("s_add_u32 s26")): continue
            out.append(l)
        b1 = "\n".join(out)
    b1 = fix_hazards(b1, verbose=opt.get("v"))
    k1 = kernel_text(NAME + "_kernel", b1, 512, 102, 256)
    open(fname, "w").write(file_text([f"; @launch grid=(256,1,1) block=(256,1,1) lds={LDS_BYTES}"], [k1]))
    return k.nst
```

```python
import sys
sys.path.insert(0, "gen")
import g18, g19, g20
T0 = {11: ["E","q0a"], 12: ["q1a","q1b","q2a"], 13: ["q2b","q3a","q3b"], 14: ["p0","p1"], 15: ["p2","p3"], 16: ["p4","p5"], 17: ["p6","p7"], 18: ["e"]}
VS = {4: ["X1","X2"], 5: ["Q0a","Q0b","Q1a"], 6: ["Q1b","Q2a","Q2b"]}
KS = "s_lshr_b32 s61, s34, 3\ns_lshl_b32 s61, s61, 1\ns_add_u32 s61, s61, s3"
def base(taus, ksp, vs=VS, **kw):
    o = {"wopf": 0, "local": 0, "wopf2": "p7", "chk0at": 6, "ospan": 6, "efirst": 8, "nreg": 4, "ksel": KS,
         "sched": {**T0, **vs}, "kpos": {p: {t: [0, 1, 2]} for p, t in enumerate(taus)}, "kspread": {3: ksp}}
    o.update(kw); return o
V = {
 "az1": base([-1, 2, 6, 10, 14, 18, 22, 26], (30, 1)),
 "az6": base([-1, 2, 5, 8, 11, 14, 17, 20], (28, 1)),
 "az7": base([-1, 2, 6, 10, 14, 18, 22, 26], (30, 1), {4: ["X1","X2","Q0a"], 5: ["Q0b","Q1a","Q1b"], 6: ["Q2a","Q2b","Q3a"]}),
 "az8": base([-1, 2, 5, 9, 13, 17, 20, 23], (26, 1)),
 "az9": base([-1, 2, 6, 10, 14, 18, 22, 26], (30, 1), {4: ["X1"], 5: ["X2","Q0a","Q0b"], 6: ["Q1a","Q1b","Q2a","Q2b"]}),
 "ba1": base([5, 8, 11, 14, 17, 20, 23, 26], (30, 1)),
 "ba2": base([3, 7, 10, 14, 17, 21, 24, 27], (31, 1)),
 "ba3": base([5, 8, 11, 14, 17, 20, 23, 26], (30, 1), {4: ["X1"], 5: ["X2","Q0a","Q0b"], 6: ["Q1a","Q1b","Q2a","Q2b"]}),
 "bb0": base([-1, 2, 6, 10, 14, 18, 22, 26], (30, 1)),
 "bb1": base([-1, 2, 6, 10, 14, 18, 22, 26], (30, 1), codepf=33000),
 "bc0": base([-1, 2, 6, 10, 14, 18, 22, 26], (30, 1), g=19),
 "bc0slow": base([-1, 2, 6, 10, 14, 18, 22, 26], (30, 1), g=19, lo=30),
 "bc1": base([-1, 2, 6, 10, 14, 18, 22, 26], (30, 1), g=19, fl1at=3, fl1pos=1, chk1pos=14),
 "bc2": base([-1, 2, 6, 10, 14, 18, 22, 26], (30, 1), g=19, fl1pos=18, chk1pos=10, o2steps=(3, 3, 4)),
 "bc3": base([-1, 2, 6, 10, 14, 18, 22, 26], (30, 1), g=19, fl1pos=6, chk1pos=4),
 "bd0": base([-1, 2, 6, 10, 14, 18, 22, 26], (30, 1), g=20, q16=0),
 "bd1": base([-1, 2, 6, 10, 14, 18, 22, 26], (30, 1), g=20, q16=1),
 "bd1slow": base([-1, 2, 6, 10, 14, 18, 22, 26], (30, 1), g=20, q16=1, lo=30),
 "be0": dict(base([9, 15, 21, 27], (32, 2), {}, g=20, q16=0), ksel="s_lshr_b32 s61, s34, 3\ns_add_u32 s61, s61, s3"),
 "be1": dict(base([9, 15, 21, 27], (32, 2), {}, g=20, q16=0, chain=1), ksel="s_lshr_b32 s61, s34, 3\ns_add_u32 s61, s61, s3"),
 "be2": base([-1, 2, 6, 10, 14, 18, 22, 26], (30, 1), g=20, q16=0, chain=1),
 "be3": base([3, 7, 10, 14, 17, 21, 24, 27], (31, 1), g=20, q16=0),
}
if __name__ == "__main__":
    for n in (sys.argv[1:] or V):
        m = {18: g18, 19: g19, 20: g20}[V[n].get("g", 18)]
        m.gen(f"dev/{n}.s", opt=dict(V[n]))
        m.gen(f"dev/{n}_lt.s", stamps=True, opt=dict(V[n], lite=1))
        m.gen(f"dev/{n}_st.s", stamps=True, opt=dict(V[n]))
        m.gen(f"dev/{n}_tr.s", stamps=True, opt=dict(V[n], trace=2))
        m.gen(f"dev/{n}_o.s", stamps=True, opt=dict(V[n], only3=1, p3st=(0,1,2,3,4,5,6,7)))
```
